```python
import torch

def _softmax(x, axis=-1):
    return torch.softmax(x, dim=axis)

def _gelu(x):
    return torch.nn.functional.gelu(x, approximate='tanh')

def _silu(x):
    return torch.nn.functional.silu(x)

def _sigmoid(x):
    return torch.sigmoid(x)

def _layernorm(x, axis=-1, eps=1e-05):
    m = x.mean(dim=axis, keepdim=True)
    v = x.var(dim=axis, keepdim=True, unbiased=False)
    return (x - m) / torch.sqrt(v + eps)

def _scatter_add(tgt, idx, src, axis=0):
    return tgt.clone().index_add_(axis, idx, src)

def _segment_sum(src, seg, n):
    out = torch.zeros((n,) + src.shape[1:], dtype=src.dtype)
    return out.index_add_(0, seg, src)

def _pad(x, pw):
    flat = tuple((v for pair in reversed(pw) for v in pair))
    return torch.nn.functional.pad(x, flat)
kernel_name = 'adaLN_cond__sliding_block_cached__geglu_ffn__decode'

def setup_inputs():

    _w = lambda a: (lambda t: t.to(torch.bfloat16) if t.is_floating_point() else t)(torch.as_tensor(a))

    def _A_setup():
        B, Sq, D = (2, 1, 640)
        Hq, Hkv, Sk, Dh = (32, 32, 4096, 192)
        assert Hq % Hkv == 0, (Hq, Hkv)
        return {'x': _w((lambda *s: torch.randn(*s, dtype=torch.bfloat16) * 0.05)(B, Sq, D)), 'k_cache': _w((lambda *s: torch.randn(*s, dtype=torch.bfloat16) * 3.2)(B, Hkv, Sk, Dh)), 'v_cache': _w((lambda *s: torch.randn(*s, dtype=torch.bfloat16) * 0.4)(B, Hkv, Sk, Dh)), 'wq': _w((lambda *s: torch.randn(*s, dtype=torch.bfloat16) * 3.2)(D, Hq * Dh) * D ** (-0.5)), 'wo': _w((lambda *s: torch.randn(*s, dtype=torch.bfloat16) * 0.4)(Hq * Dh, D) * (Hq * Dh) ** (-0.5))}
    _A_in = _A_setup()

    def _B_setup():
        B, S, D, F = (2, 1, 640, 1536)
        return {'x': _w((lambda *s: torch.randn(*s, dtype=torch.bfloat16) * 0.05)(B, S, D)), 'w_gate': _w((lambda *s: torch.randn(*s, dtype=torch.bfloat16) * 0.05)(D, F)), 'w_up': _w((lambda *s: torch.randn(*s, dtype=torch.bfloat16) * 0.05)(D, F)), 'w_down': _w((lambda *s: torch.randn(*s, dtype=torch.bfloat16) * 0.05)(F, D))}
    _B_in = _B_setup()
    return {'A_x': _A_in['x'], 'A_k_cache': _A_in['k_cache'], 'A_v_cache': _A_in['v_cache'], 'A_wq': _A_in['wq'], 'A_wo': _A_in['wo'], 'B_x': _B_in['x'], 'B_w_gate': _B_in['w_gate'], 'B_w_up': _B_in['w_up'], 'B_w_down': _B_in['w_down'], 'c': _w((lambda *s: torch.randn(*s, dtype=torch.bfloat16) * 0.1)(2, 640) * 8.0), 'w_mod': _w((lambda *s: torch.randn(*s, dtype=torch.bfloat16) * 0.1)(640, 6 * 640) * 640 ** (-0.5) * 8.0)}

def reference(A_x, A_k_cache, A_v_cache, A_wq, A_wo, B_x, B_w_gate, B_w_up, B_w_down, c, w_mod):

    def _A_ref(x, k_cache, v_cache, wq, wo):
        B, Sq, D = x.shape
        Hq, Dh = (32, 192)
        Hkv, Sk = (k_cache.shape[1], k_cache.shape[2])
        W = min(4096, max(256, Sk // 4))
        rep = Hq // Hkv
        q = (lambda x, *d: x.permute(*d))((x @ wq).reshape(B, Sq, Hq, Dh), 0, 2, 1, 3)
        k = (lambda x, n, axis: torch.repeat_interleave(x, n, dim=axis))(k_cache[:, :, Sk - W:, :], rep, axis=1)
        v = (lambda x, n, axis: torch.repeat_interleave(x, n, dim=axis))(v_cache[:, :, Sk - W:, :], rep, axis=1)
        scores = torch.einsum('bhqd,bhkd->bhqk', q, k) * Dh ** (-0.5)
        p = _softmax(scores, axis=-1)
        o = torch.einsum('bhqk,bhkd->bhqd', p, v)
        return (lambda x, *d: x.permute(*d))(o, 0, 2, 1, 3).reshape(B, Sq, Hq * Dh) @ wo

    def _B_ref(x, w_gate, w_up, w_down):
        return _gelu(x @ w_gate) * (x @ w_up) @ w_down
    x = A_x
    mod = (_silu(c) @ w_mod).reshape(c.shape[0], 6, 1, -1)
    sa, ca, ga, sb, cb, gb = (mod[:, 0].clone(), mod[:, 1].clone(), mod[:, 2].clone(), mod[:, 3].clone(), mod[:, 4].clone(), mod[:, 5].clone())
    h = _layernorm(x, axis=-1) * (1 + ca) + sa
    x = x + ga * _A_ref(h, A_k_cache, A_v_cache, A_wq, A_wo)
    h = _layernorm(x, axis=-1) * (1 + cb) + sb
    x = x + gb * _B_ref(h, B_w_gate, B_w_up, B_w_down)
    return x
```

```python
import re

TRANS = ("v_exp_f32","v_log_f32","v_rcp_f32","v_rsq_f32","v_sqrt_f32","v_sin_f32","v_cos_f32","v_rcp_iflag_f32")

def _expand(tok):
    tok = tok.strip()
    tok = tok.lstrip('-').strip('|')
    if tok.startswith("abs(") and tok.endswith(")"): tok = tok[4:-1]
    m = re.fullmatch(r"([vsa])\[(\d+):(\d+)\]", tok)
    if m:
        return {(m.group(1), i) for i in range(int(m.group(2)), int(m.group(3)) + 1)}
    m = re.fullmatch(r"([vsa])(\d+)", tok)
    if m: return {(m.group(1), int(m.group(2)))}
    if tok in ("vcc", "vcc_lo", "vcc_hi"): return {("vcc", 0)}
    if tok in ("exec", "exec_lo", "exec_hi"): return {("exec", 0)}
    if tok == "m0": return {("m0", 0)}
    return set()

class Ins:
    __slots__ = ("text","op","dst","src","kind","states","dpp","lds_dma")
    def __init__(self, text):
        self.text = text
        t = text.split(";")[0].strip()
        parts = t.split(None, 1)
        self.op = parts[0]
        rest = parts[1] if len(parts) > 1 else ""
        ops = [o.strip() for o in re.split(r",(?![^\[]*\])", rest)] if rest else []
        mods = ""
        if ops:
            sp = ops[-1].split(None, 1)
            ops[-1] = sp[0]
            mods = sp[1] if len(sp) > 1 else ""
        op = self.op
        base = re.sub(r"_(e32|e64|dpp|sdwa)$", "", op)
        self.dpp = ("quad_perm" in mods or "row_" in mods or "wave_" in mods)
        self.lds_dma = (op.startswith("buffer_load") and re.search(r"\blds\b", mods) is not None) or op.startswith("global_load_lds")
        self.states = 1
        dst = set(); src = set()
        E = [ _expand(o) for o in ops ]
        if op == "s_nop":
            self.kind = "nop"; self.states = int(ops[0], 0) + 1
        elif op.startswith("v_mfma"):
            self.kind = "mfma"; dst = E[0]; src = E[1] | E[2] | E[3]
        elif op.startswith("v_"):
            self.kind = "valu"
            if base.startswith("v_cmp"):
                dst = E[0]; src = set().union(*E[1:]) if len(E) > 1 else set()
                if base.startswith("v_cmpx"): dst = dst | {("exec",0)}
            elif base in ("v_readlane_b32","v_readfirstlane_b32"):
                dst = E[0]; src = set().union(*E[1:])
            elif base.startswith("v_permlane") and "swap" in base:
                dst = E[0] | E[1]; src = E[0] | E[1]
            elif base in ("v_add_co_u32","v_sub_co_u32","v_subrev_co_u32"):
                dst = E[0] | E[1]; src = set().union(*E[2:])
            elif base in ("v_addc_co_u32","v_subb_co_u32"):
                dst = E[0] | E[1]; src = set().union(*E[2:])
            else:
                dst = E[0]; src = set().union(*E[1:]) if len(E) > 1 else set()
                if base in ("v_fmac_f32","v_dot2c_f32_bf16","v_writelane_b32","v_mac_f32","v_pk_fmac_f16"): src |= E[0]
                if base == "v_cndmask_b32" and len(E) == 3: src |= {("vcc",0)}
                if self.dpp: src |= E[0]
        elif op.startswith("ds_"):
            self.kind = "ds"
            if op.startswith("ds_read") or op.startswith("ds_bpermute") or op.startswith("ds_permute") or op.startswith("ds_swizzle") or "_rtn" in op:
                dst = E[0]; src = set().union(*E[1:]) if len(E) > 1 else set()
            else:
                src = set().union(*E)
        elif op.startswith("buffer_") or op.startswith("global_") or op.startswith("flat_"):
            self.kind = "vmem"
            if "load" in op and not self.lds_dma:
                dst = E[0]; src = set().union(*E[1:])
            elif "atomic" in op and "sc0" in mods:
                dst = E[0]; src = set().union(*E)
            else:
                src = set().union(*E)
        elif op.startswith("s_"):
            self.kind = "salu"
            if op in ("s_waitcnt","s_barrier","s_endpgm","s_branch","s_sleep","s_setprio") or op.startswith("s_cbranch"):
                pass
            elif op.startswith("s_cmp") or op.startswith("s_bitcmp"):
                src = set().union(*E) if E else set()
            else:
                dst = E[0] if E else set(); src = set().union(*E[1:]) if len(E) > 1 else set()
                if "saveexec" in op: dst = dst | {("exec",0)}
        else:
            self.kind = "other"
        self.dst = dst; self.src = src
        self.op = base

def need(prev, cur):
    n = 0
    pd = prev.dst
    if prev.kind == "valu":
        vd = {r for r in pd if r[0] in "va"}
        sd = {r for r in pd if r[0] in ("s","vcc")}
        touch = cur.src
        if vd & touch:
            if cur.kind == "mfma": n = max(n, 2)
            if cur.kind == "valu" and cur.dpp: n = max(n, 2)
            if cur.kind == "valu" and cur.op.startswith("v_permlane"): n = max(n, 2)
            if cur.kind == "valu" and cur.op in ("v_readlane_b32","v_readfirstlane_b32"): n = max(n, 1)
            if prev.op in TRANS and cur.kind in ("valu","mfma","vmem","ds"): n = max(n, 1)
        if sd & touch:
            if cur.kind == "valu":
                if cur.op in ("v_readlane_b32","v_writelane_b32"): n = max(n, 4)
                else: n = max(n, 2)
            if cur.kind == "vmem": n = max(n, 5)
            if cur.kind == "salu": n = max(n, 2)
        if ("exec",0) in pd:
            n = max(n, 5 if cur.kind in ("valu","mfma") else 0)
        if ("vcc",0) in pd and cur.op in ("s_cbranch_vccz","s_cbranch_vccnz"): n = max(n, 2)
    if prev.kind == "mfma":
        passes = 8 if "32x32" in prev.op else 4
        w = {4: 8, 8: 12}[passes]
        if cur.kind == "mfma":
            t = cur.text.split(";")[0]
            ops = [o.strip() for o in re.split(r",(?![^\[]*\])", t.split(None,1)[1])]
            A = _expand(ops[1]); B = _expand(ops[2]); C = _expand(ops[3].split()[0])
            if pd & (A | B): n = max(n, w)
            if pd & C and not (pd == C): n = max(n, {4: 6, 8: 10}[passes])
            if pd & cur.dst and not (pd == C): n = max(n, w)
        else:
            if pd & (cur.src | cur.dst): n = max(n, w)
        if cur.kind == "valu":
            t = prev.text.split(";")[0]
            ops = [o.strip() for o in re.split(r",(?![^\[]*\])", t.split(None,1)[1])]
            C = _expand(ops[3].split()[0])
            if C & cur.dst: n = max(n, {4: 3, 8: 7}[passes])
    if prev.kind == "salu":
        if ("m0",0) in pd and cur.lds_dma: n = max(n, 1)
    if prev.kind == "vmem" and ("store" in prev.op) and ("x4" in prev.op or "x3" in prev.op):
        if cur.kind == "valu" and (prev.src & cur.dst & {r for r in prev.src if r[0]=="v"}): n = max(n, 2)
    if prev.kind == "ds" and ("write" in prev.op) and "b128" in prev.op:
        if cur.kind == "valu" and (prev.src & cur.dst): n = max(n, 1)
    return n

class Asm:
    def __init__(self):
        self.lines = []
        self._lab = 0
    def __call__(self, s):
        for l in s.split("\n"):
            l = l.strip()
            if l: self.lines.append(l)
    def label(self, name):
        self.lines.append(name + ":")
    def newlabel(self, p="L"):
        self._lab += 1
        return f"{p}_{self._lab}"
    def comment(self, s):
        self.lines.append("; " + s)
    def finalize(self):
        out = []; hist = []
        for l in self.lines:
            if l.startswith(";") or l.endswith(":") or l.startswith("."):
                out.append(l); continue
            ins = Ins(l)
            req = 0
            dist = 0
            for p in reversed(hist):
                n = need(p, ins)
                if n > dist: req = max(req, n - dist)
                dist += p.states
                if dist > 24: break
            if req > 0:
                k = req
                while k > 0:
                    m = min(k, 16)
                    nop = Ins(f"s_nop {m-1}")
                    out.append(nop.text); hist.append(nop); k -= m
            out.append(l); hist.append(ins)
            if len(hist) > 40: hist = hist[-40:]
        return out
```

```python
import sys, argparse
from asmlib import Asm

KN = "adaLN_cond__sliding_block_cached__geglu_ffn__decode_kernel"
WS_MODP=0x1000; WS_QP=0x20000; WS_OP=0x50000; WS_YP=0x90000; WS_DP=0xA0000; WS_STAMP=0x100000
L_SLOT0=0; L_SLOT1=40960; L_WO=40960; L_GU=0; L_DOWN=81920; L_X1=133120
SCR=139264
QTAB=SCR; WMAX=SCR+512; WSUM=SCR+544; FLAGL=SCR+576; STAT=SCR+640
FTAB=SCR+1536; T1=SCR+3072; T2=SCR+9216; RED=SCR+9728
LDS_BYTES=163840
PVW=1568; R16=528
LOG2E=0x3fb8aa3b
DPPM="row_mask:0xf bank_mask:0xf"

class G:
    def __init__(self, P):
        self.P = P; self.a = Asm()
        self.NT = " nt" if P.get("nt", True) else ""
        self.stamps = P.get("stamps", False)
    def stamp(self, idx):
        if not self.stamps: return
        self.a(f"""s_memrealtime s[96:97]
        s_lshl_b32 s98, s2, 4
        s_add_u32 s98, s98, s4
        s_lshl_b32 s98, s98, 6
        s_add_u32 s98, s98, {WS_STAMP + idx*4}
        s_waitcnt lgkmcnt(0)
        v_mov_b32 v166, s98
        v_mov_b32 v167, s96
        s_mov_b64 s[100:101], exec
        s_mov_b64 exec, 1
        global_store_dword v166, v167, s[10:11]
        s_mov_b64 exec, s[100:101]""")
    def tags(self):
        self.a("""s_add_u32 s7, s7, 1
        s_and_b32 s8, s7, 0x7f
        s_add_u32 s8, s8, 1
        s_add_u32 s9, s8, 127""")
    def tagput(self, r):
        for i in range(4): self.a(f"v_and_or_b32 v{r+i}, v{r+i}, v5, s{8+(i&1)}")
    def tagchk(self, r, first=False):
        for i in range(4):
            src = "0" if (first and i == 0) else "v7"
            self.a(f"v_msad_u8 v7, v{r+i}, s{8+(i&1)}, {src}")
    def poll_end(self, lab):
        self.a(f"""v_cmp_ne_u32 vcc, 0, v7
        s_cbranch_vccz {lab}_ok
        s_add_u32 s95, s95, 1
        s_cmp_gt_u32 s95, 0x10000
        s_cbranch_scc1 {lab}_ok
        s_sleep {self.P.get("sleep",1)}
        s_branch {lab}
        {lab}_ok:""")
    def bf(self, r, n=1):
        for i in range(n): self.a(f"v_cvt_pk_bf16_f32 v{r+i}, v{r+i}, v{r+i}")
        for i in range(n): self.a(f"v_and_b32 v{r+i}, 0xffff0000, v{r+i}")
    def masks(self, m0):
        a = self.a
        a("""v_and_b32 v2, 1, v0
        v_mov_b32 v3, 0xffff
        v_mov_b32 v4, 0xffff0000
        v_cmp_eq_u32 vcc, 1, v2
        v_cndmask_b32 v3, v3, v4, vcc
        v_bfe_u32 v2, v0, 1, 2""")
        for r in range(4):
            a(f"v_cmp_eq_u32 vcc, {r}, v2")
            a(f"v_cndmask_b32 v{m0+r}, 0, v3, vcc")
    def gather(self, addrs, lab, base, rnd=True):
        a = self.a
        a(f"{lab}:")
        for g, va in enumerate(addrs):
            for k in range(4):
                r = base + g*16 + k*4
                a(f"global_load_dwordx4 v[{r}:{r+3}], v{va}, s[10:11] offset:{k*1024} sc1")
        a("s_waitcnt vmcnt(0)")
        for g in range(len(addrs)*4): self.tagchk(base+4*g, first=(g == 0))
        self.poll_end(lab)
        for g in range(len(addrs)):
            r = base + g*16
            for i in range(4):
                a(f"v_add_f32 v{r+i}, v{r+i}, v{r+4+i}")
                a(f"v_add_f32 v{r+8+i}, v{r+8+i}, v{r+12+i}")
            for i in range(4): a(f"v_add_f32 v{r+i}, v{r+i}, v{r+8+i}")
            if rnd: self.bf(r, 4)
    def dpp_sum(self, regs, mods, op="v_add_f32"):
        for mod in mods:
            for r in regs: self.a(f"{op}_dpp v{r}, v{r}, v{r} {mod} {DPPM}")

    def A_wave(self):
        a = self.a; P = self.P; NT = self.NT
        KR=16; VR=64; QR=112; MK=124; SC=128; ACC=132; AOP=144
        self.MK = MK
        a(f"""s_load_dwordx4 s[12:15], s[0:1], 8
        s_lshr_b32 s20, s6, 2
        s_lshr_b32 s21, s20, 2
        s_and_b32 s20, s20, 3
        s_lshl_b32 s22, s5, 2
        s_add_u32 s20, s20, s22
        s_lshl_b32 s21, s21, 5
        s_add_u32 s20, s20, s21
        s_lshl_b32 s20, s20, 12
        s_and_b32 s21, s6, 3
        s_lshl_b32 s21, s21, 8
        s_add_u32 s20, s20, s21
        s_lshl_b32 s21, s4, 5
        s_add_u32 s20, s20, s21
        s_add_u32 s20, s20, 3072
        s_mul_i32 s27, s20, 384
        v_lshrrev_b32 v1, 3, v0
        v_mul_u32_u24 v1, 384, v1
        v_and_b32 v2, 7, v0
        v_lshlrev_b32 v2, 4, v2
        v_add_u32 v1, v1, v2
        s_movk_i32 s24, 3072
        s_movk_i32 s25, 6144
        s_movk_i32 s26, 9216
        s_waitcnt lgkmcnt(0)
        s_load_dword s7, s[10:11], 0
        s_add_u32 s16, s12, s27
        s_addc_u32 s17, s13, 0
        s_movk_i32 s18, 12288
        s_mov_b32 s19, 0x20000
        s_add_u32 s20, s14, s27
        s_addc_u32 s21, s15, 0
        s_movk_i32 s22, 12288
        s_mov_b32 s23, 0x20000""")
        self.stamp(0)
        a("s_barrier")
        lims = P.get("lims", [3]*18 + [0]*6)
        so = ["0", "s24", "s25", "s26"]
        for i in range(24):
            isK = i < 12; ii = i % 12; t4, th = divmod(ii, 3)
            reg = (KR if isK else VR) + ii*4
            srd = "s[16:19]" if isK else "s[20:23]"
            lim = lims[i]
            if lim and i >= lim: a(f"s_waitcnt vmcnt({lim-1})")
            a(f"buffer_load_dwordx4 v[{reg}:{reg+3}], v1, {srd}, {so[t4]} offen offset:{th*128}{NT}")
        self.masks(MK)
        a("v_mov_b32 v5, 0xffffff00")
        a("s_waitcnt lgkmcnt(0)")
        self.tags()
        self.stamp(1)
        a("s_barrier")
        self.stamp(2)
        a(f"""v_and_b32 v2, 7, v0
        v_lshlrev_b32 v2, 4, v2
        v_add_u32 v2, {QTAB}, v2
        ds_read_b128 v[{QR}:{QR+3}], v2
        ds_read_b128 v[{QR+4}:{QR+7}], v2 offset:128
        ds_read_b128 v[{QR+8}:{QR+11}], v2 offset:256
        s_waitcnt vmcnt(12)
        s_waitcnt lgkmcnt(0)""")
        for t4 in range(4): a(f"v_dot2_f32_bf16 v{SC+t4}, v{KR+t4*12}, v{QR}, 0")
        for i in range(1, 12):
            for t4 in range(4): a(f"v_dot2c_f32_bf16 v{SC+t4}, v{KR+t4*12+i}, v{QR+i}")
        S4 = [SC+t for t in range(4)]
        self.dpp_sum(S4, ("quad_perm:[1,0,3,2]", "quad_perm:[2,3,0,1]", "row_half_mirror"))
        a("s_mov_b32 s28, 0x3d93cd3a")
        self.bf(SC, 4)
        for t4 in range(4): a(f"v_mul_f32 v{SC+t4}, s28, v{SC+t4}")
        self.bf(SC, 4)
        a(f"""v_max_f32 v2, v{SC}, v{SC+1}
        v_max3_f32 v2, v2, v{SC+2}, v{SC+3}
        v_max_f32_dpp v2, v2, v2 row_ror:8 {DPPM}
        v_mov_b32 v3, v2
        v_permlane16_swap_b32 v2, v3
        v_max_f32 v2, v2, v3
        v_mov_b32 v3, v2
        v_permlane32_swap_b32 v2, v3
        v_max_f32 v2, v2, v3
        s_lshl_b32 s29, s4, 2
        s_add_u32 s29, s29, {WMAX}
        v_mov_b32 v3, s29
        ds_write_b32 v3, v2
        s_waitcnt lgkmcnt(0)
        s_barrier
        v_mov_b32 v4, {WMAX}
        ds_read_b128 v[8:11], v4
        ds_read_b128 v[12:15], v4 offset:16
        s_waitcnt lgkmcnt(0)
        v_max3_f32 v8, v8, v9, v10
        v_max3_f32 v12, v12, v13, v14
        v_max3_f32 v8, v8, v11, v15
        v_max_f32 v6, v8, v12
        s_mov_b32 s28, {LOG2E}""")
        for t4 in range(4): a(f"v_sub_f32 v{SC+t4}, v{SC+t4}, v6")
        for t4 in range(4): a(f"v_mul_f32 v{SC+t4}, s28, v{SC+t4}")
        for t4 in range(4): a(f"v_exp_f32 v{SC+t4}, v{SC+t4}")
        a(f"""v_add_f32 v2, v{SC}, v{SC+1}
        v_add_f32 v3, v{SC+2}, v{SC+3}
        v_add_f32 v2, v2, v3
        v_add_f32_dpp v2, v2, v2 row_ror:8 {DPPM}
        v_mov_b32 v3, v2
        v_permlane16_swap_b32 v2, v3
        v_add_f32 v2, v2, v3
        v_mov_b32 v3, v2
        v_permlane32_swap_b32 v2, v3
        v_add_f32 v2, v2, v3
        v_mov_b32 v3, s29
        ds_write_b32 v3, v2 offset:32""")
        for t4 in range(4): a(f"v_cvt_pk_bf16_f32 v{SC+t4}, v{SC+t4}, v{SC+t4}")
        a(f"""v_and_b32 v2, 7, v0
        v_lshlrev_b32 v2, 5, v2
        v_bfe_u32 v3, v0, 4, 1
        v_lshlrev_b32 v3, 4, v3
        v_add_u32 v2, v2, v3
        v_lshrrev_b32 v3, 5, v0
        v_mul_u32_u24 v3, 768, v3
        v_add_u32 v2, v2, v3
        s_mul_i32 s29, s4, {PVW}
        s_add_u32 s29, s29, {RED}
        v_add_u32 v2, s29, v2
        s_lshl_b32 s29, s4, 3
        v_lshrrev_b32 v8, 3, v0
        v_add_u32 v8, s29, v8
        v_and_b32 v3, 7, v0
        v_mul_u32_u24 v3, {PVW}, v3
        v_lshlrev_b32 v4, 4, v8
        v_add_u32 v3, v3, v4
        v_add_u32 v3, {RED}, v3
        s_lshl_b32 s29, s5, 5
        s_add_u32 s29, s29, s6
        s_lshl_b32 s29, s29, 10
        s_add_u32 s29, s29, {WS_OP}
        v_add_u32 v4, s29, v4""")
        for t4 in range(4):
            ar = AOP + (t4 & 1)*4
            for r in range(4): a(f"v_and_b32 v{ar+r}, v{SC+t4}, v{MK+r}")
            for th in range(3):
                i = t4*3 + th
                a(f"s_waitcnt vmcnt({11-i})")
                c = "0" if t4 == 0 else f"v[{ACC+th*4}:{ACC+th*4+3}]"
                a(f"v_mfma_f32_16x16x32_bf16 v[{ACC+th*4}:{ACC+th*4+3}], v[{ar}:{ar+3}], v[{VR+i*4}:{VR+i*4+3}], {c}")
        self.stamp(3)
        a(f"""s_mov_b32 exec_lo, 0x00ff00ff
        s_mov_b32 exec_hi, 0xff00ff00
        ds_write_b128 v2, v[{ACC}:{ACC+3}]
        ds_write_b128 v2, v[{ACC+4}:{ACC+7}] offset:256
        ds_write_b128 v2, v[{ACC+8}:{ACC+11}] offset:512
        s_mov_b64 exec, -1
        s_waitcnt lgkmcnt(0)
        s_barrier
        s_cmp_ge_u32 s4, 6
        s_cbranch_scc1 L_A_ml
        ds_read_b128 v[8:11], v3
        ds_read_b128 v[12:15], v3 offset:768
        s_waitcnt lgkmcnt(0)""")
        for i in range(4): a(f"v_add_f32 v{8+i}, v{8+i}, v{12+i}")
        self.dpp_sum([8,9,10,11], ("quad_perm:[1,0,3,2]", "quad_perm:[2,3,0,1]", "row_half_mirror"))
        self.tagput(8)
        a(f"""s_mov_b32 exec_lo, 0x01010101
        s_mov_b32 exec_hi, 0x01010101
        global_store_dwordx4 v4, v[8:11], s[10:11] sc1
        s_mov_b64 exec, -1
        s_branch L_A_tail
        L_A_ml:
        s_cmp_eq_u32 s4, 6
        s_cbranch_scc0 L_A_tail
        v_mov_b32 v4, {WSUM}
        ds_read_b128 v[8:11], v4
        ds_read_b128 v[12:15], v4 offset:16
        s_add_u32 s29, s29, 768
        v_mov_b32 v4, s29
        s_waitcnt lgkmcnt(0)
        v_add_f32 v8, v8, v9
        v_add_f32 v10, v10, v11
        v_add_f32 v12, v12, v13
        v_add_f32 v14, v14, v15
        v_add_f32 v8, v8, v10
        v_add_f32 v12, v12, v14
        v_add_f32 v9, v8, v12
        v_mov_b32 v8, v6
        v_mov_b32 v10, v6
        v_mov_b32 v11, v9""")
        self.tagput(8)
        a(f"""s_mov_b64 exec, 1
        global_store_dwordx4 v4, v[8:11], s[10:11] sc1
        s_mov_b64 exec, -1
        L_A_tail:""")
        self.stamp(4)
        a("""s_cmp_lt_u32 s6, 10
        s_cbranch_scc1 L_WO
        s_cmp_lt_u32 s6, 16
        s_cbranch_scc1 L_FFN
        s_endpgm""")

    def gemv1x2(self, nt, W0, TB, acc0, aop):
        a = self.a; MK = self.MK
        a(f"""v_lshrrev_b32 v2, 3, v0
        v_lshlrev_b32 v2, 3, v2
        s_mul_i32 s29, s4, {nt//2*128}
        s_add_u32 s29, s29, {T1}
        v_add_u32 v2, s29, v2""")
        self._g_pre = None
    def gemv1x2_run(self, nt, W0, TB, acc0, aop):
        a = self.a; MK = self.MK
        for q in range(nt//2):
            for b in range(2):
                r = TB + (q*2+b)*2
                a(f"ds_read_b64 v[{r}:{r+1}], v2 offset:{q*128+b*64}")
        a(f"""v_and_b32 v3, 7, v0
        v_lshlrev_b32 v3, 5, v3
        v_bfe_u32 v4, v0, 4, 1
        v_lshlrev_b32 v4, 4, v4
        v_add_u32 v3, v3, v4
        v_lshrrev_b32 v4, 5, v0
        v_mul_u32_u24 v4, {R16}, v4
        v_add_u32 v3, v3, v4
        s_mul_i32 s29, s4, {2*R16}
        s_add_u32 s29, s29, {RED}
        v_add_u32 v3, s29, v3""")
        first = [True, True]
        seq = [(n, b) for n in range(nt) for b in range(2)]
        for idx, (n, b) in enumerate(seq):
            q, u = divmod(n, 2)
            if u == 0 and b == 0: a(f"s_waitcnt lgkmcnt({(nt//2 - 1 - q)*2})")
            ar = aop + (idx & 1)*4
            tv = TB + (q*2+b)*2 + u
            for r in range(4): a(f"v_and_b32 v{ar+r}, v{tv}, v{MK+r}")
            d = acc0 + 4*b
            c = "0" if first[b] else f"v[{d}:{d+3}]"
            first[b] = False
            a(f"v_mfma_f32_16x16x32_bf16 v[{d}:{d+3}], v[{ar}:{ar+3}], v[{W0+4*n}:{W0+4*n+3}], {c}")
        a(f"""s_mov_b32 exec_lo, 0x00ff00ff
        s_mov_b32 exec_hi, 0xff00ff00
        ds_write_b128 v3, v[{acc0}:{acc0+3}]
        ds_write_b128 v3, v[{acc0+4}:{acc0+7}] offset:256
        s_mov_b64 exec, -1
        s_waitcnt lgkmcnt(0)
        s_barrier""")

    def WO(self):
        a = self.a
        W0=16; OG=64; ML=80; GA=96; TB=64; GACC=112; GAOP=144
        a.label("L_WO")
        a(f"""v_lshlrev_b32 v2, 4, v0
        s_mul_i32 s29, s4, {12*1024}
        s_add_u32 s29, s29, {L_WO}
        v_add_u32 v2, s29, v2""")
        for n in range(12): a(f"ds_read_b128 v[{W0+4*n}:{W0+4*n+3}], v2 offset:{n*1024}")
        a(f"""s_lshl_b32 s29, s4, 2
        v_lshrrev_b32 v12, 4, v0
        v_add_u32 v12, s29, v12
        v_lshrrev_b32 v3, 4, v12
        v_lshlrev_b32 v3, 9, v3
        v_and_b32 v2, 15, v12
        v_lshlrev_b32 v2, 4, v2
        v_add_u32 v13, v2, v3
        s_lshr_b32 s29, s6, 1
        s_add_u32 s29, s29, 10
        s_lshl_b32 s29, s29, 12
        s_and_b32 s30, s6, 1
        s_lshl_b32 s30, s30, 8
        s_add_u32 s29, s29, s30
        s_add_u32 s29, s29, {WS_MODP}
        v_add_u32 v2, s29, v13""")
        self.gather([2], "L_WO_ga", GA)
        a(f"""s_lshr_b32 s29, s6, 1
        s_lshl_b32 s29, s29, 6
        s_and_b32 s30, s6, 1
        s_lshl_b32 s30, s30, 4
        s_add_u32 s29, s29, s30
        s_lshl_b32 s29, s29, 4
        s_mul_i32 s30, s5, 5120
        s_add_u32 s29, s29, s30
        s_add_u32 s29, s29, {WS_YP}
        v_add_u32 v13, s29, v13
        v_and_b32 v14, 15, v0
        v_mul_u32_u24 v14, {R16}, v14
        v_lshlrev_b32 v12, 4, v12
        v_add_u32 v14, v14, v12
        v_add_u32 v14, {RED}, v14
        s_and_b32 s29, s4, 3
        s_mul_i32 s29, s29, {12*128}
        s_lshr_b32 s30, s4, 2
        s_lshl_b32 s30, s30, 6
        s_add_u32 s29, s29, s30
        s_add_u32 s29, s29, {T1}
        v_lshrrev_b32 v15, 2, v0
        v_lshlrev_b32 v15, 7, v15
        v_and_b32 v3, 1, v0
        v_lshlrev_b32 v3, 5, v3
        v_add_u32 v15, v15, v3
        v_bfe_u32 v3, v0, 1, 1
        v_lshlrev_b32 v3, 2, v3
        v_add3_u32 v15, v15, v3, s29
        s_lshl_b32 s29, s5, 5
        s_lshl_b32 s30, s4, 2
        s_add_u32 s29, s29, s30
        s_lshl_b32 s29, s29, 10
        s_add_u32 s29, s29, {WS_OP}
        v_lshlrev_b32 v3, 4, v0
        v_add_u32 v3, s29, v3
        v_mov_b32 v4, s29
        s_mov_b32 s28, {LOG2E}
        s_mov_b32 exec_lo, -1
        s_mov_b32 exec_hi, 0x0000ffff
        L_WO_poll:""")
        for s in range(4): a(f"global_load_dwordx4 v[{OG+4*s}:{OG+4*s+3}], v3, s[10:11] offset:{s*1024} sc1")
        for s in range(4): a(f"global_load_dwordx4 v[{ML+4*s}:{ML+4*s+3}], v4, s[10:11] offset:{s*1024+768} sc1")
        a("s_waitcnt vmcnt(0)")
        for s in range(4): self.tagchk(OG+4*s, first=(s == 0))
        for s in range(4): self.tagchk(ML+4*s)
        self.poll_end("L_WO_poll")
        self.stamp(5)
        for s in range(4): a(f"v_and_b32 v{ML+4*s}, v5, v{ML+4*s}")
        a(f"""v_max_f32 v6, v{ML}, v{ML+4}
        v_max3_f32 v6, v6, v{ML+8}, v{ML+12}""")
        for s in range(4): a(f"v_sub_f32 v{ML+4*s}, v{ML+4*s}, v6")
        for s in range(4): a(f"v_mul_f32 v{ML+4*s}, s28, v{ML+4*s}")
        for s in range(4): a(f"v_exp_f32 v{ML+4*s}, v{ML+4*s}")
        a(f"""v_mul_f32 v7, v{ML}, v{ML+1}
        v_fmac_f32 v7, v{ML+4}, v{ML+5}
        v_fmac_f32 v7, v{ML+8}, v{ML+9}
        v_fmac_f32 v7, v{ML+12}, v{ML+13}
        v_rcp_f32 v7, v7""")
        for i in range(4): a(f"v_mul_f32 v{8+i}, v{ML}, v{OG+i}")
        for s in range(1, 4):
            for i in range(4): a(f"v_fmac_f32 v{8+i}, v{ML+4*s}, v{OG+4*s+i}")
        for i in range(4): a(f"v_mul_f32 v{8+i}, v{8+i}, v7")
        for i in range(4): a(f"v_cvt_pk_bf16_f32 v{8+i}, v{8+i}, v{8+i}")
        a(f"""ds_write2_b32 v15, v8, v9 offset0:0 offset1:2
        ds_write2_b32 v15, v10, v11 offset0:4 offset1:6
        s_mov_b64 exec, -1""")
        self.gemv1x2(12, W0, TB, GACC, GAOP)
        a("""s_waitcnt lgkmcnt(0)
        s_barrier""")
        self.stamp(9)
        self.gemv1x2_run(12, W0, TB, GACC, GAOP)
        self.stamp(10)
        a("ds_read_b128 v[8:11], v14")
        a("s_waitcnt lgkmcnt(0)")
        self.dpp_sum([8,9,10,11], ("row_ror:8", "row_ror:4", "row_ror:2", "row_ror:1"))
        for i in range(4): a(f"v_mul_f32 v{8+i}, v{8+i}, v{GA+i}")
        self.tagput(8)
        a(f"""s_mov_b32 exec_lo, 0x00010001
        s_mov_b32 exec_hi, 0x00010001
        global_store_dwordx4 v13, v[8:11], s[10:11] sc1""")
        self.stamp(6)
        a("s_endpgm")

    def FFN(self):
        a = self.a; MK = self.MK
        W0=16; DW=64; YG=128; SB=96; CB=100; GB=152
        a.label("L_FFN")
        a(f"""s_load_dwordx2 s[12:13], s[0:1], 0
        s_load_dwordx2 s[14:15], s[0:1], 88
        v_lshlrev_b32 v2, 4, v0
        s_mul_i32 s29, s4, {10*1024}
        s_add_u32 s29, s29, {L_GU}
        v_add_u32 v3, s29, v2""")
        for n in range(10): a(f"ds_read_b128 v[{W0+4*n}:{W0+4*n+3}], v3 offset:{n*1024}")
        a(f"""s_mul_i32 s31, s5, 6
        s_add_u32 s31, s31, s6
        s_sub_u32 s31, s31, 10
        s_cmp_ge_u32 s4, 5
        s_cbranch_scc1 L_FFN_w5
        s_lshl_b32 s29, s4, 13
        s_add_u32 s29, s29, {L_DOWN}
        v_add_u32 v3, s29, v2
        s_waitcnt lgkmcnt(0)""")
        for n in range(8): a(f"ds_read_b128 v[{DW+4*n}:{DW+4*n+3}], v3 offset:{n*1024}")
        a(f"""v_lshrrev_b32 v3, 5, v0
        v_mul_u32_u24 v3, 1280, v3
        v_and_b32 v4, 31, v0
        v_lshlrev_b32 v4, 3, v4
        v_add_u32 v3, v3, v4
        s_lshl_b32 s29, s4, 8
        v_add_u32 v3, s29, v3
        global_load_dwordx2 v[56:57], v3, s[12:13]
        s_add_u32 s29, s4, 15
        s_lshl_b32 s29, s29, 12
        s_add_u32 s29, s29, {WS_MODP}
        v_add_u32 v3, s29, v2
        v_add_u32 v4, {5*4096}, v3""")
        self.gather([3, 4], "L_FFN_sc", 128)
        for i in range(4): a(f"v_mov_b32 v{SB+i}, v{128+i}")
        for i in range(4): a(f"v_add_f32 v{CB+i}, 1.0, v{144+i}")
        self.bf(CB, 4)
        a(f"""v_lshlrev_b32 v58, 16, v56
        v_and_b32 v59, 0xffff0000, v56
        v_lshlrev_b32 v60, 16, v57
        v_and_b32 v61, 0xffff0000, v57
        s_lshl_b32 s29, s4, 10
        v_add_u32 v12, s29, v2
        v_add_u32 v12, {L_X1}, v12
        s_add_u32 s29, s29, {T1}
        v_bfe_u32 v13, v0, 2, 3
        v_lshlrev_b32 v13, 7, v13
        v_lshrrev_b32 v4, 5, v0
        v_lshlrev_b32 v4, 6, v4
        v_add_u32 v13, v13, v4
        v_and_b32 v4, 1, v0
        v_lshlrev_b32 v4, 5, v4
        v_add_u32 v13, v13, v4
        v_bfe_u32 v4, v0, 1, 1
        v_lshlrev_b32 v4, 2, v4
        v_add3_u32 v13, v13, v4, s29
        v_lshrrev_b32 v15, 5, v0
        v_mul_u32_u24 v15, 40, v15
        v_add_u32 v15, {STAT}, v15
        s_lshl_b32 s29, s4, 3
        v_add_u32 v14, s29, v15
        s_lshl_b32 s29, s4, 10
        s_add_u32 s29, s29, {WS_YP}
        v_add_u32 v3, s29, v2
        s_mov_b32 s30, 5120
        L_FFN_poll:
        v_mov_b32 v4, v3""")
        for ks in range(8):
            a(f"global_load_dwordx4 v[{YG+4*ks}:{YG+4*ks+3}], v4, s[10:11] sc1")
            if ks < 7: a("v_add_u32 v4, s30, v4")
        a("s_waitcnt vmcnt(0)")
        for ks in range(8): self.tagchk(YG+4*ks, first=(ks == 0))
        self.poll_end("L_FFN_poll")
        self.stamp(5)
        for i in range(4):
            a(f"v_add_f32 v{YG+i}, v{YG+i}, v{YG+4+i}")
            a(f"v_add_f32 v{YG+8+i}, v{YG+8+i}, v{YG+12+i}")
            a(f"v_add_f32 v{YG+16+i}, v{YG+16+i}, v{YG+20+i}")
            a(f"v_add_f32 v{YG+24+i}, v{YG+24+i}, v{YG+28+i}")
        for i in range(4):
            a(f"v_add_f32 v{YG+i}, v{YG+i}, v{YG+8+i}")
            a(f"v_add_f32 v{YG+16+i}, v{YG+16+i}, v{YG+24+i}")
        for i in range(4): a(f"v_add3_u32 v0, v0, 0, 0") if False else None
        for i in range(4): a(f"v_add_f32 v{YG+i}, v{YG+i}, v{YG+16+i}")
        for i in range(4): a(f"v_add_f32 v{8+i}, v{58+i}, v{YG+i}")
        self.bf(8, 4)
        a(f"""ds_write_b128 v12, v[8:11]
        v_add_f32 v{YG}, v8, v9
        v_add_f32 v{YG+2}, v10, v11
        v_mul_f32 v{YG+1}, v8, v8
        v_add_f32 v{YG}, v{YG}, v{YG+2}
        v_fmac_f32 v{YG+1}, v9, v9
        v_fmac_f32 v{YG+1}, v10, v10
        v_fmac_f32 v{YG+1}, v11, v11""")
        self.dpp_sum([YG, YG+1], ("row_ror:8", "row_ror:4", "row_ror:2", "row_ror:1"))
        a(f"""v_mov_b32 v{YG+2}, v{YG}
        v_mov_b32 v{YG+3}, v{YG+1}
        v_permlane16_swap_b32 v{YG}, v{YG+2}
        v_permlane16_swap_b32 v{YG+1}, v{YG+3}
        v_add_f32 v{YG}, v{YG}, v{YG+2}
        v_add_f32 v{YG+1}, v{YG+1}, v{YG+3}
        s_mov_b32 exec_lo, 1
        s_mov_b32 exec_hi, 1
        ds_write_b64 v14, v[{YG}:{YG+1}]
        s_mov_b64 exec, -1
        s_branch L_FFN_b1
        L_FFN_w5:
        s_cmp_eq_u32 s4, 5
        s_cbranch_scc0 L_FFN_b1
        s_cmp_ge_u32 s31, 40
        s_cbranch_scc1 L_FFN_b1
        s_lshl_b32 s33, s31, 3
        v_and_b32 v2, 7, v0
        v_add_u32 v3, s33, v2
        v_lshrrev_b32 v4, 6, v3
        v_lshlrev_b32 v4, 12, v4
        v_and_b32 v3, 63, v3
        v_lshlrev_b32 v3, 4, v3
        v_add_u32 v3, v3, v4
        v_add_u32 v3, {WS_MODP + 25*4096}, v3""")
        self.gather([3], "L_FFN_gb", GB)
        a(f"""L_FFN_b1:
        s_waitcnt lgkmcnt(0)
        s_barrier
        s_cmp_ge_u32 s4, 5
        s_cbranch_scc1 L_FFN_b2
        ds_read2_b64 v[{YG+8}:{YG+11}], v15 offset0:0 offset1:1
        ds_read2_b64 v[{YG+12}:{YG+15}], v15 offset0:2 offset1:3
        ds_read_b64 v[{YG+16}:{YG+17}], v15 offset:32
        s_mov_b32 s28, 0x3acccccd
        s_waitcnt lgkmcnt(0)
        v_add_f32 v{YG}, v{YG+8}, v{YG+10}
        v_add_f32 v{YG+1}, v{YG+9}, v{YG+11}
        v_add_f32 v{YG+2}, v{YG+12}, v{YG+14}
        v_add_f32 v{YG+3}, v{YG+13}, v{YG+15}
        v_add_f32 v{YG}, v{YG}, v{YG+16}
        v_add_f32 v{YG+1}, v{YG+1}, v{YG+17}
        v_add_f32 v{YG}, v{YG}, v{YG+2}
        v_add_f32 v{YG+1}, v{YG+1}, v{YG+3}
        v_mul_f32 v{YG}, s28, v{YG}
        v_mul_f32 v{YG+1}, s28, v{YG+1}
        v_fma_f32 v{YG+1}, -v{YG}, v{YG}, v{YG+1}
        v_max_f32 v{YG+1}, 0, v{YG+1}""")
        self.bf(YG, 2)
        a(f"v_add_f32 v{YG+1}, 0x3727c5ac, v{YG+1}")
        for i in range(4): a(f"v_sub_f32 v{8+i}, v{8+i}, v{YG}")
        self.bf(YG+1)
        a(f"v_sqrt_f32 v{YG+1}, v{YG+1}")
        self.bf(8, 4)
        self.bf(YG+1)
        a(f"v_rcp_f32 v{YG+1}, v{YG+1}")
        for i in range(4): a(f"v_mul_f32 v{8+i}, v{8+i}, v{YG+1}")
        self.bf(8, 4)
        for i in range(4): a(f"v_mul_f32 v{8+i}, v{8+i}, v{CB+i}")
        self.bf(8, 4)
        for i in range(4): a(f"v_add_f32 v{8+i}, v{8+i}, v{SB+i}")
        for i in range(4): a(f"v_cvt_pk_bf16_f32 v{8+i}, v{8+i}, v{8+i}")
        a(f"""ds_write2_b32 v13, v8, v9 offset0:0 offset1:2
        ds_write2_b32 v13, v10, v11 offset0:4 offset1:6
        L_FFN_b2:""")
        self.gemv1x2(10, W0, 96, 128, 144)
        a(f"""s_lshr_b32 s29, s4, 2
        s_lshl_b32 s29, s29, 4
        s_and_b32 s30, s4, 3
        s_lshl_b32 s30, s30, 1
        s_add_u32 s29, s29, s30
        v_bfe_u32 v14, v0, 4, 1
        v_lshlrev_b32 v14, 3, v14
        v_lshrrev_b32 v3, 5, v0
        v_add3_u32 v14, v14, v3, s29
        v_lshlrev_b32 v14, 4, v14
        v_and_b32 v4, 15, v0
        v_mul_u32_u24 v4, {R16}, v4
        v_add_u32 v14, v14, v4
        v_add_u32 v14, {RED}, v14
        v_add_u32 v3, s30, v3
        v_lshrrev_b32 v4, 2, v3
        v_lshlrev_b32 v4, 7, v4
        v_and_b32 v3, 3, v3
        v_lshlrev_b32 v3, 2, v3
        v_add_u32 v15, v3, v4
        v_and_b32 v12, 3, v0
        v_lshlrev_b32 v3, 5, v12
        v_add_u32 v15, v15, v3
        s_lshr_b32 s29, s4, 2
        s_lshl_b32 s29, s29, 4
        s_add_u32 s29, s29, {T2}
        v_add_u32 v15, s29, v15
        s_waitcnt lgkmcnt(0)
        s_barrier""")
        self.stamp(9)
        self.gemv1x2_run(10, W0, 96, 128, 144)
        self.stamp(10)
        a("""ds_read_b128 v[8:11], v14
        v_cmp_eq_u32 s[34:35], 1, v12
        v_cmp_eq_u32 s[36:37], 2, v12
        v_cmp_eq_u32 s[38:39], 3, v12
        s_mov_b32 s28, 0x3d372713
        s_waitcnt lgkmcnt(0)""")
        self.dpp_sum([8,9,10,11], ("row_ror:8", "row_ror:4", "row_ror:2", "row_ror:1"))
        a("""v_cndmask_b32 v8, v8, v9, s[34:35]
        v_cndmask_b32 v8, v8, v10, s[36:37]
        v_cndmask_b32 v8, v8, v11, s[38:39]
        v_mov_b32 v12, v8
        v_permlane16_swap_b32 v8, v12""")
        self.bf(8); self.bf(12)
        a("""v_mul_f32 v9, v8, v8
        v_mul_f32 v9, v9, v8
        v_fma_f32 v9, v9, s28, v8
        v_mul_f32 v9, 0xc0135761, v9
        v_exp_f32 v9, v9
        v_add_f32 v9, 1.0, v9
        v_rcp_f32 v9, v9
        v_mul_f32 v8, v8, v9""")
        self.bf(8)
        a(f"""v_mul_f32 v8, v8, v12
        v_cvt_pk_bf16_f32 v8, v8, v8
        s_mov_b32 exec_lo, 0xf
        s_mov_b32 exec_hi, 0xf
        ds_write_b32 v15, v8
        s_mov_b64 exec, -1
        v_lshrrev_b32 v2, 4, v0
        v_lshlrev_b32 v2, 5, v2
        v_bfe_u32 v3, v0, 3, 1
        v_lshlrev_b32 v3, 4, v3
        v_add_u32 v2, v2, v3
        v_add_u32 v2, {T2}, v2
        s_mul_i32 s29, s31, 5120
        s_lshl_b32 s30, s4, 10
        s_add_u32 s29, s29, s30
        s_add_u32 s29, s29, {WS_DP}
        v_lshrrev_b32 v4, 5, v0
        v_lshlrev_b32 v4, 9, v4
        v_and_b32 v3, 15, v0
        v_lshlrev_b32 v3, 5, v3
        v_add_u32 v4, v4, v3
        v_bfe_u32 v3, v0, 4, 1
        v_lshlrev_b32 v3, 4, v3
        v_add3_u32 v4, v4, v3, s29
        s_waitcnt lgkmcnt(0)
        s_barrier
        s_cmp_ge_u32 s4, 5
        s_cbranch_scc1 L_FIN
        ds_read_b128 v[96:99], v2
        ds_read_b128 v[100:103], v2 offset:128
        s_waitcnt lgkmcnt(1)""")
        for n in range(8):
            if n == 4: a("s_waitcnt lgkmcnt(0)")
            ar = 144 + (n & 1)*4
            for r in range(4): a(f"v_and_b32 v{ar+r}, v{96+n}, v{MK+r}")
            c = "0" if n == 0 else "v[128:131]"
            a(f"v_mfma_f32_16x16x32_bf16 v[128:131], v[{ar}:{ar+3}], v[{DW+4*n}:{DW+4*n+3}], {c}")
        self.tagput(128)
        a("global_store_dwordx4 v4, v[128:131], s[10:11] sc1")
        self.stamp(6)
        a("s_endpgm")
        a(f"""L_FIN:
        s_cmp_eq_u32 s4, 5
        s_cbranch_scc0 L_exit
        s_cmp_ge_u32 s31, 40
        s_cbranch_scc1 L_exit
        v_lshrrev_b32 v2, 3, v0
        v_mul_u32_u24 v2, {6*5120}, v2
        v_and_b32 v3, 7, v0
        v_lshlrev_b32 v3, 4, v3
        v_add_u32 v2, v2, v3
        s_lshl_b32 s29, s31, 7
        s_add_u32 s29, s29, {WS_DP}
        v_add_u32 v2, s29, v2
        s_lshl_b32 s29, s31, 7
        s_add_u32 s29, s29, {L_X1}
        v_add_u32 v4, s29, v3
        ds_read_b128 v[40:43], v4
        s_lshl_b32 s29, s31, 3
        v_add_u32 v8, s29, v0
        v_lshrrev_b32 v3, 6, v8
        v_lshlrev_b32 v3, 8, v3
        v_bfe_u32 v4, v8, 5, 1
        v_mul_u32_u24 v4, 1280, v4
        v_add_u32 v3, v3, v4
        v_and_b32 v4, 31, v8
        v_lshlrev_b32 v4, 3, v4
        v_add_u32 v8, v3, v4
        s_mov_b32 s30, 5120
        L_FIN_poll:
        v_mov_b32 v4, v2""")
        for i in range(6):
            a(f"global_load_dwordx4 v[{16+4*i}:{19+4*i}], v4, s[10:11] sc1")
            if i < 5: a("v_add_u32 v4, s30, v4")
        a("s_waitcnt vmcnt(0)")
        for i in range(6): self.tagchk(16+4*i, first=(i == 0))
        self.poll_end("L_FIN_poll")
        self.stamp(7)
        for i in range(4):
            a(f"v_add_f32 v{16+i}, v{16+i}, v{20+i}")
            a(f"v_add_f32 v{24+i}, v{24+i}, v{28+i}")
            a(f"v_add_f32 v{32+i}, v{32+i}, v{36+i}")
        for i in range(4): a(f"v_add_f32 v{16+i}, v{16+i}, v{24+i}")
        for i in range(4): a(f"v_add_f32 v{16+i}, v{16+i}, v{32+i}")
        self.dpp_sum([16,17,18,19], ("row_ror:8",))
        for i in range(4): a(f"v_mov_b32 v{20+i}, v{16+i}")
        for i in range(4): a(f"v_permlane16_swap_b32 v{16+i}, v{20+i}")
        for i in range(4): a(f"v_add_f32 v{16+i}, v{16+i}, v{20+i}")
        for i in range(4): a(f"v_mov_b32 v{20+i}, v{16+i}")
        for i in range(4): a(f"v_permlane32_swap_b32 v{16+i}, v{20+i}")
        for i in range(4): a(f"v_add_f32 v{16+i}, v{16+i}, v{20+i}")
        a("s_waitcnt lgkmcnt(0)")
        self.bf(16, 4)
        for i in range(4): a(f"v_mul_f32 v{16+i}, v{16+i}, v{GB+i}")
        self.bf(16, 4)
        for i in range(4): a(f"v_add_f32 v{16+i}, v{16+i}, v{40+i}")
        a(f"""v_cvt_pk_bf16_f32 v16, v16, v17
        v_cvt_pk_bf16_f32 v17, v18, v19
        s_mov_b64 exec, 0xff
        global_store_dwordx2 v8, v[16:17], s[14:15]
        s_cmp_eq_u32 s31, 0
        s_cbranch_scc0 L_FIN_done
        s_mov_b64 exec, 1
        v_mov_b32 v2, 0
        v_mov_b32 v3, s7
        global_store_dword v2, v3, s[10:11]
        L_FIN_done:""")
        self.stamp(8)
        a("s_endpgm")

    def qunit(self, ureg, d1, d2):
        self.a(f"""s_mul_i32 s{d2}, s{ureg}, 43
        s_lshr_b32 s{d2}, s{d2}, 8
        s_mul_i32 s{d1}, s{d2}, 6
        s_sub_u32 s{d1}, s{ureg}, s{d1}
        s_mul_i32 s3, s5, 6
        s_add_u32 s{d1}, s{d1}, s3""")
    def unit_dma(self, treg, i1, i2, ldsbase, lab, lim):
        a = self.a
        a(f"""s_cmp_eq_u32 s{treg}, 2
        s_cselect_b32 s40, s12, s14
        s_cselect_b32 s41, s13, s15
        s_mov_b32 s42, 4915200
        s_cselect_b32 s42, 7864320, s42
        s_mov_b32 s43, 0x20000
        s_movk_i32 s44, 7680
        s_cselect_b32 s44, 12288, s44
        v_lshrrev_b32 v2, 4, v0
        v_mul_lo_u32 v2, s44, v2
        v_and_b32 v3, 15, v0
        v_lshlrev_b32 v3, 4, v3
        v_add_u32 v2, v2, v3
        s_mul_i32 s45, s{i2}, 160
        s_mul_i32 s45, s45, s44
        s_lshl_b32 s46, s{i1}, 8
        s_add_u32 s45, s45, s46
        s_lshl_b32 s44, s44, 2
        s_mov_b32 m0, {ldsbase}
        s_movk_i32 s46, 40
        {lab}:
        buffer_load_dwordx4 v2, s[40:43], s45 offen{self.NT} lds
        s_add_u32 s45, s45, s44
        s_add_u32 m0, m0, 1024""")
        if lim: a(f"s_waitcnt vmcnt({lim-1})")
        a(f"""s_sub_u32 s46, s46, 1
        s_cmp_lg_u32 s46, 0
        s_cbranch_scc1 {lab}""")

    def L_wave(self):
        a = self.a; P = self.P; NT = self.NT
        limL = P.get("limL", 12)
        a.label("L_L")
        a(f"""s_setprio {P.get("prioL",2)}
        s_cmp_lt_u32 s6, 10
        s_cbranch_scc1 L_L_wo
        s_cmp_lt_u32 s6, 16
        s_cbranch_scc1 L_L_ffn
        s_sub_u32 s20, s6, 16
        s_cmp_lt_u32 s20, 10
        s_cbranch_scc1 L_L_mod
        s_cmp_lt_u32 s20, 13
        s_cbranch_scc1 L_exit
        s_add_u32 s21, s20, 8
        s_mov_b32 s30, 2""")
        self.qunit(21, 31, 32)
        a(f"""s_branch L_L_unit
        L_L_mod:
        s_mul_i32 s21, s5, 10
        s_add_u32 s21, s21, s20
        s_lshr_b32 s31, s21, 2
        s_add_u32 s31, s31, 10
        s_and_b32 s32, s21, 3
        s_mov_b32 s30, 1
        L_L_unit:
        s_load_dwordx2 s[12:13], s[0:1], 24
        s_load_dwordx2 s[14:15], s[0:1], 80
        s_waitcnt lgkmcnt(0)
        s_barrier""")
        self.unit_dma(30, 31, 32, L_SLOT1, "L_L_unit_loop", limL)
        a(f"""s_waitcnt vmcnt(0)
        v_mov_b32 v2, {FLAGL}
        v_mov_b32 v3, 1
        ds_write_b32 v2, v3
        s_waitcnt lgkmcnt(0)
        s_endpgm
        L_L_wo:
        s_load_dwordx2 s[40:41], s[0:1], 32
        v_lshrrev_b32 v2, 3, v0
        v_mul_u32_u24 v2, 1280, v2
        v_and_b32 v3, 7, v0
        v_lshlrev_b32 v3, 4, v3
        v_add_u32 v2, v2, v3
        s_mov_b32 s42, 7864320
        s_mov_b32 s43, 0x20000
        s_mul_i32 s45, s5, {768*1280}
        s_lshl_b32 s46, s6, 7
        s_add_u32 s45, s45, s46
        s_mov_b32 m0, {L_WO}
        s_movk_i32 s46, 96
        s_waitcnt lgkmcnt(0)
        s_barrier
        L_L_wo_loop:
        buffer_load_dwordx4 v2, s[40:43], s45 offen{NT} lds
        s_add_u32 s45, s45, 10240
        s_add_u32 m0, m0, 1024
        s_waitcnt vmcnt({limL-1})
        s_sub_u32 s46, s46, 1
        s_cmp_lg_u32 s46, 0
        s_cbranch_scc1 L_L_wo_loop
        s_waitcnt vmcnt(0)""")
        self.stamp(1)
        a(f"""s_endpgm
        L_L_ffn:
        s_load_dwordx4 s[12:15], s[0:1], 48
        s_load_dwordx2 s[40:41], s[0:1], 64
        s_mul_i32 s31, s5, 6
        s_add_u32 s31, s31, s6
        s_sub_u32 s31, s31, 10
        v_lshrrev_b32 v2, 3, v0
        v_mul_u32_u24 v2, 3072, v2
        v_and_b32 v3, 3, v0
        v_lshlrev_b32 v3, 4, v3
        v_add_u32 v2, v2, v3
        s_lshl_b32 s29, s31, 6
        v_add_u32 v2, s29, v2
        v_bfe_u32 v3, v0, 2, 1
        v_cmp_eq_u32 vcc, 1, v3
        s_waitcnt lgkmcnt(0)
        v_mov_b32 v4, s12
        v_mov_b32 v5, s13
        v_mov_b32 v6, s14
        v_mov_b32 v7, s15
        v_cndmask_b32 v4, v4, v6, vcc
        v_cndmask_b32 v5, v5, v7, vcc
        v_add_co_u32 v4, vcc, v4, v2
        v_addc_co_u32 v5, vcc, 0, v5, vcc
        s_mov_b32 m0, {L_GU}
        s_movk_i32 s46, 80
        s_movk_i32 s44, 24576
        s_barrier
        L_L_gu_loop:
        global_load_lds_dwordx4 v[4:5], off{NT}
        v_add_co_u32 v4, vcc, s44, v4
        v_addc_co_u32 v5, vcc, 0, v5, vcc
        s_add_u32 m0, m0, 1024
        s_waitcnt vmcnt({limL-1})
        s_sub_u32 s46, s46, 1
        s_cmp_lg_u32 s46, 0
        s_cbranch_scc1 L_L_gu_loop
        v_lshrrev_b32 v2, 4, v0
        v_mul_u32_u24 v2, 1280, v2
        v_and_b32 v3, 15, v0
        v_lshlrev_b32 v3, 4, v3
        v_add_u32 v2, v2, v3
        s_mov_b32 s42, 1966080
        s_mov_b32 s43, 0x20000
        s_mul_i32 s47, s31, {32*1280}
        s_mov_b32 s48, 0
        L_L_dn_outer:
        s_add_u32 s45, s47, s48
        s_movk_i32 s46, 8
        L_L_dn_loop:
        buffer_load_dwordx4 v2, s[40:43], s45 offen{NT} lds
        s_add_u32 s45, s45, 5120
        s_add_u32 m0, m0, 1024
        s_waitcnt vmcnt({limL-1})
        s_sub_u32 s46, s46, 1
        s_cmp_lg_u32 s46, 0
        s_cbranch_scc1 L_L_dn_loop
        s_add_u32 s48, s48, 256
        s_cmp_lt_u32 s48, 1280
        s_cbranch_scc1 L_L_dn_outer
        s_waitcnt vmcnt(0)""")
        self.stamp(1)
        a("s_endpgm")

    def F_wave(self):
        a = self.a; P = self.P
        FM = 124
        a.label("L_F")
        a(f"""s_setprio 3
        s_load_dwordx2 s[12:13], s[0:1], 24
        s_load_dwordx2 s[14:15], s[0:1], 80
        s_load_dwordx2 s[16:17], s[0:1], 72
        s_load_dwordx2 s[18:19], s[0:1], 0
        v_mov_b32 v2, {FLAGL}
        v_mov_b32 v3, 0
        ds_write_b32 v2, v3
        s_mov_b32 s20, 0
        s_mov_b32 s25, 0
        s_mov_b32 s39, 0
        s_cmp_lt_u32 s6, 10
        s_cbranch_scc1 L_F_wo
        s_cmp_lt_u32 s6, 16
        s_cbranch_scc1 L_F_dec_done
        s_sub_u32 s33, s6, 16
        s_mul_i32 s34, s5, 10
        s_add_u32 s34, s34, s33
        s_lshr_b32 s26, s34, 2
        s_add_u32 s26, s26, 10
        s_and_b32 s27, s34, 3
        s_mov_b32 s28, {L_SLOT1}
        s_mov_b32 s23, {L_SLOT0}
        s_cmp_lt_u32 s33, 5
        s_cbranch_scc0 L_F_d2
        s_mul_i32 s34, s5, 5
        s_add_u32 s34, s34, s33
        s_mov_b32 s20, 1
        s_lshr_b32 s21, s34, 2
        s_and_b32 s22, s34, 3
        s_mov_b32 s25, 1
        s_mov_b32 s39, 1
        s_branch L_F_dec_done
        L_F_d2:
        s_add_u32 s34, s33, 5""")
        self.qunit(34, 21, 22)
        a(f"""s_mov_b32 s20, 2
        s_cmp_lt_u32 s33, 10
        s_cselect_b32 s25, 1, 0
        s_cmp_lt_u32 s33, 13
        s_cbranch_scc1 L_F_dec_done
        s_mov_b32 s25, 2
        s_add_u32 s26, s21, 3
        s_mov_b32 s27, s22
        s_branch L_F_dec_done
        L_F_wo:
        s_mov_b32 s34, s6""")
        self.qunit(34, 21, 22)
        a(f"""s_mov_b32 s20, 2
        s_mov_b32 s23, {L_SLOT0}
        L_F_dec_done:
        s_waitcnt lgkmcnt(0)
        s_load_dword s7, s[10:11], 0
        s_cmp_eq_u32 s20, 0
        s_cbranch_scc1 L_F_nodma
        v_lshrrev_b32 v2, 5, v0
        v_mul_u32_u24 v2, 1280, v2
        v_and_b32 v3, 31, v0
        v_lshlrev_b32 v3, 3, v3
        v_add_u32 v2, v2, v3""")
        for k in range(5): a(f"global_load_dwordx2 v[{8+2*k}:{9+2*k}], v2, s[18:19] offset:{k*256}")
        a(f"""s_cmp_eq_u32 s20, 2
        s_cselect_b32 s36, s18, s16
        s_cselect_b32 s37, s19, s17
        s_mul_i32 s33, s22, 320
        v_lshlrev_b32 v2, 3, v0
        v_add_u32 v2, s33, v2
        s_mov_b32 exec_lo, -1
        s_mov_b32 exec_hi, 0xff
        global_load_dwordx2 v[18:19], v2, s[36:37]
        global_load_dwordx2 v[20:21], v2, s[36:37] offset:1280
        s_mov_b64 exec, -1""")
        self.unit_dma(20, 21, 22, L_SLOT0, "L_F_dma_loop", 0)
        a("L_F_nodma:")
        self.masks(FM)
        a("v_mov_b32 v5, 0xffffff00")
        a("s_waitcnt lgkmcnt(0)")
        self.tags()
        self.stamp(0)
        a(f"""s_cmp_eq_u32 s39, 1
        s_cbranch_scc1 L_F_nobar
        s_barrier
        L_F_nobar:
        s_mov_b32 s35, -1
        s_mov_b32 s38, 0
        s_cmp_eq_u32 s20, 0
        s_cbranch_scc1 L_F_gath
        s_waitcnt vmcnt(40)
        L_F_job:
        s_cmp_eq_u32 s20, 2
        s_cbranch_scc1 L_F_prepQ
        ; ---- MOD prep: silu(c slice in v18..21)""")
        for b in range(2):
            s0 = 18+2*b; d = 24+4*b
            a(f"""v_lshlrev_b32 v{d}, 16, v{s0}
            v_and_b32 v{d+1}, 0xffff0000, v{s0}
            v_lshlrev_b32 v{d+2}, 16, v{s0+1}
            v_and_b32 v{d+3}, 0xffff0000, v{s0+1}""")
        for i in range(8): a(f"v_mul_f32 v{32+i}, 0xbfb8aa3b, v{24+i}")
        for i in range(8): a(f"v_exp_f32 v{32+i}, v{32+i}")
        for i in range(8): a(f"v_add_f32 v{32+i}, 1.0, v{32+i}")
        for i in range(8): a(f"v_rcp_f32 v{32+i}, v{32+i}")
        for i in range(8): a(f"v_mul_f32 v{112+i}, v{24+i}, v{32+i}")
        a("""s_mov_b32 s35, -1
        s_mov_b32 exec_lo, -1
        s_mov_b32 exec_hi, 0xff
        s_branch L_F_table
        L_F_prepQ:
        s_cmp_eq_u32 s35, s22
        s_cbranch_scc1 L_F_gemv
        s_mov_b32 s35, s22""")
        for k in range(10):
            a(f"v_lshlrev_b32 v{24+2*k}, 16, v{8+k}")
            a(f"v_and_b32 v{25+2*k}, 0xffff0000, v{8+k}")
        a("v_add_f32 v44, v24, v25")
        a("v_add_f32 v45, v26, v27")
        for k in range(4, 20, 2):
            a(f"v_add_f32 v44, v44, v{24+k}")
            a(f"v_add_f32 v45, v45, v{25+k}")
        a("v_add_f32 v44, v44, v45")
        def red32(r, t):
            self.dpp_sum([r], ("row_ror:8", "row_ror:4", "row_ror:2", "row_ror:1"))
            a(f"""v_mov_b32 v{t}, v{r}
            v_permlane16_swap_b32 v{r}, v{t}
            v_add_f32 v{r}, v{r}, v{t}""")
        red32(44, 45)
        a("v_mul_f32 v44, 0x3acccccd, v44")
        for k in range(20): a(f"v_sub_f32 v{24+k}, v{24+k}, v44")
        a("v_mul_f32 v46, v24, v24")
        a("v_mul_f32 v47, v25, v25")
        for k in range(2, 20, 2):
            a(f"v_fmac_f32 v46, v{24+k}, v{24+k}")
            a(f"v_fmac_f32 v47, v{25+k}, v{25+k}")
        a("v_add_f32 v46, v46, v47")
        red32(46, 45)
        a("v_mul_f32 v46, 0x3acccccd, v46")
        self.bf(44); self.bf(46)
        a("v_add_f32 v46, 0x3727c5ac, v46")
        self.bf(46)
        a("v_sqrt_f32 v46, v46")
        self.bf(46)
        a("v_rcp_f32 v46, v46")
        a(f"""v_readlane_b32 s48, v44, 0
        v_readlane_b32 s49, v46, 0
        v_readlane_b32 s50, v44, 32
        v_readlane_b32 s51, v46, 32
        s_mul_i32 s33, s22, 160
        v_lshlrev_b32 v2, 2, v0
        v_add_u32 v2, s33, v2
        v_lshrrev_b32 v3, 7, v2
        v_lshlrev_b32 v3, 12, v3
        v_and_b32 v2, 127, v2
        v_lshlrev_b32 v2, 2, v2
        v_add_u32 v2, v2, v3
        v_add_u32 v2, {WS_MODP}, v2
        v_add_u32 v3, {5*4096}, v2
        s_mov_b32 exec_lo, -1
        s_mov_b32 exec_hi, 0xff""")
        for b in range(2):
            t = 24+4*b; xs = 18+2*b
            a(f"""v_lshlrev_b32 v{t}, 16, v{xs}
            v_and_b32 v{t+1}, 0xffff0000, v{xs}
            v_lshlrev_b32 v{t+2}, 16, v{xs+1}
            v_and_b32 v{t+3}, 0xffff0000, v{xs+1}""")
        for b in range(2):
            t = 24+4*b
            for i in range(4): a(f"v_subrev_f32 v{t+i}, s{48+2*b}, v{t+i}")
            self.bf(t, 4)
            for i in range(4): a(f"v_mul_f32 v{t+i}, s{49+2*b}, v{t+i}")
            self.bf(t, 4)
        G_ = 48
        a("L_F_pollh:")
        for wh in range(2):
            for b in range(2):
                for ks in range(4):
                    r = G_ + ((wh*2+b)*4+ks)*4
                    a(f"global_load_dwordx4 v[{r}:{r+3}], v{2+wh}, s[10:11] offset:{ks*1024+b*512} sc1")
        a("s_waitcnt vmcnt(0)")
        for g in range(16): self.tagchk(G_+4*g, first=(g == 0))
        self.poll_end("L_F_pollh")
        self.stamp(1)
        for grp in range(4):
            r = G_ + grp*16
            for i in range(4):
                a(f"v_add_f32 v{r+i}, v{r+i}, v{r+4+i}")
                a(f"v_add_f32 v{r+8+i}, v{r+8+i}, v{r+12+i}")
            for i in range(4): a(f"v_add_f32 v{r+i}, v{r+i}, v{r+8+i}")
            self.bf(r, 4)
        for b in range(2):
            t = 24+4*b; d = 112+4*b; sa = G_+b*16; ca = G_+32+b*16
            for i in range(4): a(f"v_add_f32 v{ca+i}, 1.0, v{ca+i}")
            self.bf(ca, 4)
            for i in range(4): a(f"v_mul_f32 v{t+i}, v{t+i}, v{ca+i}")
            self.bf(t, 4)
            for i in range(4): a(f"v_add_f32 v{d+i}, v{t+i}, v{sa+i}")
        a("L_F_table:")
        for i in range(8): a(f"v_cvt_pk_bf16_f32 v{112+i}, v{112+i}, v{112+i}")
        a(f"""v_lshrrev_b32 v2, 2, v0
        v_lshlrev_b32 v2, 7, v2
        v_and_b32 v3, 3, v0
        v_lshlrev_b32 v3, 2, v3
        v_add_u32 v2, v2, v3
        v_add_u32 v2, {FTAB}, v2
        ds_write2_b32 v2, v112, v113 offset0:0 offset1:8
        ds_write2_b32 v2, v114, v115 offset0:16 offset1:24
        ds_write2_b32 v2, v116, v117 offset0:4 offset1:12
        ds_write2_b32 v2, v118, v119 offset0:20 offset1:28
        s_mov_b64 exec, -1
        L_F_gemv:
        s_cmp_eq_u32 s23, {L_SLOT0}
        s_cbranch_scc1 L_F_wown
        v_mov_b32 v2, {FLAGL}
        L_F_wflag:
        ds_read_b32 v3, v2
        s_waitcnt lgkmcnt(0)
        v_readfirstlane_b32 s33, v3
        s_cmp_eq_u32 s33, 1
        s_cbranch_scc1 L_F_wown
        s_add_u32 s95, s95, 1
        s_cmp_gt_u32 s95, 0x100000
        s_cbranch_scc1 L_F_wown
        s_sleep 2
        s_branch L_F_wflag
        L_F_wown:
        s_waitcnt vmcnt(0) lgkmcnt(0)""")
        self.stamp(2)
        def rd(tab, w):
            a(f"""ds_read_b128 v[{tab}:{tab+3}], v2
            ds_read_b128 v[{w}:{w+3}], v3
            ds_read_b128 v[{w+4}:{w+7}], v3 offset:1024
            ds_read_b128 v[{w+8}:{w+11}], v3 offset:2048
            ds_read_b128 v[{w+12}:{w+15}], v3 offset:3072
            v_add_u32 v2, 128, v2
            v_add_u32 v3, 4096, v3""")
        def cmp_(tab, w):
            for u in range(4):
                ar = 88+(u & 1)*4
                for r in range(4): a(f"v_and_b32 v{ar+r}, v{tab+u}, v{FM+r}")
                a(f"v_mfma_f32_16x16x32_bf16 v[96:99], v[{ar}:{ar+3}], v[{w+4*u}:{w+4*u+3}], v[96:99]")
        a(f"""v_lshrrev_b32 v2, 4, v0
        v_lshlrev_b32 v2, 5, v2
        v_bfe_u32 v3, v0, 3, 1
        v_lshlrev_b32 v3, 4, v3
        v_add_u32 v2, v2, v3
        v_add_u32 v2, {FTAB}, v2
        v_lshlrev_b32 v3, 4, v0
        v_add_u32 v3, s23, v3""")
        rd(48, 52)
        a("""v_mov_b32 v96, 0
        v_mov_b32 v97, 0
        v_mov_b32 v98, 0
        v_mov_b32 v99, 0
        s_movk_i32 s33, 5
        L_F_gloop:""")
        rd(68, 72)
        a("s_waitcnt lgkmcnt(5)")
        cmp_(48, 52)
        rd(48, 52)
        a("s_waitcnt lgkmcnt(5)")
        cmp_(68, 72)
        a(f"""s_sub_u32 s33, s33, 1
        s_cmp_lg_u32 s33, 0
        s_cbranch_scc1 L_F_gloop
        s_lshl_b32 s33, s21, 2
        s_add_u32 s33, s33, s22
        s_lshl_b32 s33, s33, 10
        s_cmp_eq_u32 s20, 2
        s_mov_b32 s34, {WS_MODP}
        s_cselect_b32 s34, {WS_QP}, s34
        s_add_u32 s33, s33, s34
        v_lshrrev_b32 v2, 5, v0
        v_lshlrev_b32 v2, 9, v2
        v_and_b32 v3, 15, v0
        v_lshlrev_b32 v3, 5, v3
        v_add_u32 v2, v2, v3
        v_bfe_u32 v3, v0, 4, 1
        v_lshlrev_b32 v3, 4, v3
        v_add3_u32 v2, v2, v3, s33""")
        self.tagput(96)
        a("global_store_dwordx4 v2, v[96:99], s[10:11] sc1")
        self.stamp(3)
        a(f"""s_waitcnt lgkmcnt(0)
        s_cmp_eq_u32 s39, 1
        s_cbranch_scc0 L_F_nobar2
        s_mov_b32 s39, 0
        s_barrier
        L_F_nobar2:
        s_add_u32 s38, s38, 1
        s_cmp_ge_u32 s38, 2
        s_cbranch_scc1 L_F_gath
        s_cmp_eq_u32 s25, 0
        s_cbranch_scc1 L_F_gath
        s_mov_b32 s20, s25
        s_mov_b32 s21, s26
        s_mov_b32 s22, s27
        s_mov_b32 s23, s28
        s_cmp_eq_u32 s20, 2
        s_cbranch_scc1 L_F_job
        s_mul_i32 s33, s22, 320
        v_lshlrev_b32 v2, 3, v0
        v_add_u32 v2, s33, v2
        s_mov_b32 exec_lo, -1
        s_mov_b32 exec_hi, 0xff
        global_load_dwordx2 v[18:19], v2, s[16:17]
        global_load_dwordx2 v[20:21], v2, s[16:17] offset:1280
        s_mov_b64 exec, -1
        s_waitcnt vmcnt(0)
        s_branch L_F_job
        L_F_gath:
        s_lshr_b32 s33, s6, 2
        s_lshr_b32 s34, s33, 2
        s_and_b32 s33, s33, 3
        s_mul_i32 s33, s33, 192
        v_lshlrev_b32 v2, 2, v0
        v_add_u32 v2, s33, v2
        v_lshrrev_b32 v3, 7, v2
        s_mul_i32 s33, s5, 6
        v_add_u32 v3, s33, v3
        v_lshlrev_b32 v3, 12, v3
        v_and_b32 v2, 127, v2
        v_lshlrev_b32 v2, 2, v2
        s_lshl_b32 s34, s34, 9
        s_add_u32 s34, s34, {WS_QP}
        v_add3_u32 v8, v2, v3, s34
        s_mov_b32 exec_lo, -1
        s_mov_b32 exec_hi, 0xffff""")
        self.gather([8], "L_F_q_poll", 16)
        a(f"""s_mov_b32 s52, 0x07060302
        v_perm_b32 v16, v17, v16, s52
        v_perm_b32 v17, v19, v18, s52
        v_lshlrev_b32 v2, 3, v0
        v_add_u32 v2, {QTAB}, v2
        ds_write_b64 v2, v[16:17]
        s_waitcnt lgkmcnt(0)""")
        self.stamp(4)

    def build(self):
        a = self.a
        a.lines += [f"; @launch grid=(256,1,1) block=(640,1,1) lds={LDS_BYTES}", '.amdgcn_target "amdgcn-amd-amdhsa--gfx950"',
                    ".text", f".globl {KN}", ".p2align 8", f".type {KN},@function", f"{KN}:"]
        a("""s_cmp_ge_u32 s2, 256
        s_cbranch_scc1 L_exit
        s_load_dwordx2 s[10:11], s[0:1], 104
        v_lshrrev_b32 v1, 6, v0
        v_and_b32 v0, 63, v0
        v_readfirstlane_b32 s4, v1
        s_mov_b32 s95, 0
        s_and_b32 s5, s2, 7
        s_lshr_b32 s6, s2, 3
        s_cmp_eq_u32 s4, 8
        s_cbranch_scc1 L_F
        s_cmp_eq_u32 s4, 9
        s_cbranch_scc1 L_L""")
        self.A_wave(); self.WO(); self.FFN(); self.L_wave(); self.F_wave()
        a("""L_exit:
        s_endpgm""")
        out = a.finalize()
        out += ['.section .rodata,"a"', ".p2align 6", f".amdhsa_kernel {KN}",
                "  .amdhsa_next_free_vgpr 168", "  .amdhsa_next_free_sgpr 102", "  .amdhsa_accum_offset 168",
                "  .amdhsa_group_segment_fixed_size 0", "  .amdhsa_kernarg_size 112", "  .amdhsa_user_sgpr_count 2",
                "  .amdhsa_user_sgpr_kernarg_segment_ptr 1", "  .amdhsa_system_sgpr_workgroup_id_x 1",
                "  .amdhsa_float_denorm_mode_32 3", ".end_amdhsa_kernel"]
        return "\n".join(out) + "\n"

def gen(P): return G(P).build()

if __name__ == "__main__":
    p = argparse.ArgumentParser()
    p.add_argument("-o", default="k2.s"); p.add_argument("--stamps", type=int, default=0); p.add_argument("--nt", type=int, default=1)
    p.add_argument("--lims", default=""); p.add_argument("--limL", type=int, default=12); p.add_argument("--sleep", type=int, default=1)
    args = p.parse_args()
    P = dict(stamps=bool(args.stamps), nt=bool(args.nt), limL=args.limL, sleep=args.sleep)
    if args.lims: P["lims"] = [int(c) for c in args.lims.split(",")]
    open(args.o, "w").write(gen(P))
```

```python
import sys, argparse
from asmlib import Asm

KN = "adaLN_cond__sliding_block_cached__geglu_ffn__decode_kernel"
WS_MODP=0x1000; WS_QP=0x20000; WS_OP=0x50000; WS_YP=0x90000; WS_DP=0xA0000; WS_STAMP=0x100000
L_SLOT0=0; L_SLOT1=40960; L_WO=40960; L_GU=0; L_DOWN=81920; L_X1=133120
SCR=139264
QTAB=SCR; WMAX=SCR+512; WSUM=SCR+544; FLAGL=SCR+576; STAT=SCR+640
FTAB=SCR+1536; T1=SCR+3072; T2=SCR+9216; RED=SCR+9728
LDS_BYTES=163840
PVW=1568; R16=528
LOG2E=0x3fb8aa3b
DPPM="row_mask:0xf bank_mask:0xf"

class G:
    def __init__(self, P):
        self.P = P; self.a = Asm()
        self.NT = " nt" if P.get("nt", True) else ""
        self.stamps = P.get("stamps", False)
    def stamp(self, idx):
        if not self.stamps: return
        self.a(f"""s_memrealtime s[96:97]
        s_lshl_b32 s98, s2, 4
        s_add_u32 s98, s98, s4
        s_lshl_b32 s98, s98, 6
        s_add_u32 s98, s98, {WS_STAMP + idx*4}
        s_waitcnt lgkmcnt(0)
        v_mov_b32 v166, s98
        v_mov_b32 v167, s96
        s_mov_b64 s[100:101], exec
        s_mov_b64 exec, 1
        global_store_dword v166, v167, s[10:11]
        s_mov_b64 exec, s[100:101]""")
    def dstamp(self, idx, cond_wg=None, cond_wave=None):
        if not self.P.get("dbg", False): return
        lab = self.a.newlabel("L_ds")
        self.a(f"""s_cmp_eq_u32 s2, {cond_wg}
        s_cbranch_scc0 {lab}
        s_cmp_eq_u32 s4, {cond_wave}
        s_cbranch_scc0 {lab}
        s_memrealtime s[96:97]
        s_load_dwordx2 s[98:99], s[0:1], 96
        s_waitcnt lgkmcnt(0)
        v_mov_b32 v166, {idx*4}
        v_mov_b32 v167, s96
        s_mov_b64 s[100:101], exec
        s_mov_b64 exec, 1
        global_store_dword v166, v167, s[98:99]
        s_mov_b64 exec, s[100:101]
        {lab}:""")
    def tags(self):
        self.a("""s_add_u32 s7, s7, 1
        s_and_b32 s8, s7, 0x7f
        s_add_u32 s8, s8, 1
        s_add_u32 s9, s8, 127""")
    def tagput(self, r):
        for i in range(4): self.a(f"v_and_or_b32 v{r+i}, v{r+i}, v5, s{8+(i&1)}")
    def tagchk(self, r, first=False):
        for i in range(4):
            src = "0" if (first and i == 0) else "v7"
            self.a(f"v_msad_u8 v7, v{r+i}, s{8+(i&1)}, {src}")
    def poll_end(self, lab):
        self.a(f"""v_cmp_ne_u32 vcc, 0, v7
        s_cbranch_vccz {lab}_ok
        s_add_u32 s95, s95, 1
        s_cmp_gt_u32 s95, 0x10000
        s_cbranch_scc1 {lab}_ok
        s_sleep {self.P.get("sleep",1)}
        s_branch {lab}
        {lab}_ok:""")
    def bf(self, r, n=1):
        for i in range(n): self.a(f"v_cvt_pk_bf16_f32 v{r+i}, v{r+i}, v{r+i}")
        for i in range(n): self.a(f"v_and_b32 v{r+i}, 0xffff0000, v{r+i}")
    def masks(self, m0):
        a = self.a
        a("""v_and_b32 v2, 1, v0
        v_mov_b32 v3, 0xffff
        v_mov_b32 v4, 0xffff0000
        v_cmp_eq_u32 vcc, 1, v2
        v_cndmask_b32 v3, v3, v4, vcc
        v_bfe_u32 v2, v0, 1, 2""")
        for r in range(4):
            a(f"v_cmp_eq_u32 vcc, {r}, v2")
            a(f"v_cndmask_b32 v{m0+r}, 0, v3, vcc")
    def gather(self, addrs, lab, base, rnd=True):
        a = self.a
        a(f"{lab}:")
        for g, va in enumerate(addrs):
            for k in range(4):
                r = base + g*16 + k*4
                a(f"global_load_dwordx4 v[{r}:{r+3}], v{va}, s[10:11] offset:{k*1024} sc1")
        a("s_waitcnt vmcnt(0)")
        for g in range(len(addrs)*4): self.tagchk(base+4*g, first=(g == 0))
        self.poll_end(lab)
        for g in range(len(addrs)):
            r = base + g*16
            for i in range(4):
                a(f"v_add_f32 v{r+i}, v{r+i}, v{r+4+i}")
                a(f"v_add_f32 v{r+8+i}, v{r+8+i}, v{r+12+i}")
            for i in range(4): a(f"v_add_f32 v{r+i}, v{r+i}, v{r+8+i}")
            if rnd: self.bf(r, 4)
    def dpp_sum(self, regs, mods, op="v_add_f32"):
        for mod in mods:
            for r in regs: self.a(f"{op}_dpp v{r}, v{r}, v{r} {mod} {DPPM}")

    def A_wave(self):
        a = self.a; P = self.P; NT = self.NT
        KR=16; VR=64; QR=112; MK=124; SC=128; ACC=132; AOP=144
        self.MK = MK
        a(f"""s_load_dwordx4 s[12:15], s[0:1], 8
        s_lshr_b32 s20, s6, 2
        s_lshr_b32 s21, s20, 2
        s_and_b32 s20, s20, 3
        s_lshl_b32 s22, s5, 2
        s_add_u32 s20, s20, s22
        s_lshl_b32 s21, s21, 5
        s_add_u32 s20, s20, s21
        s_lshl_b32 s20, s20, 12
        s_and_b32 s21, s6, 3
        s_lshl_b32 s21, s21, 8
        s_add_u32 s20, s20, s21
        s_lshl_b32 s21, s4, 5
        s_add_u32 s20, s20, s21
        s_add_u32 s20, s20, 3072
        s_mul_i32 s27, s20, 384
        v_lshrrev_b32 v1, 3, v0
        v_mul_u32_u24 v1, 384, v1
        v_and_b32 v2, 7, v0
        v_lshlrev_b32 v2, 4, v2
        v_add_u32 v1, v1, v2
        s_movk_i32 s24, 3072
        s_movk_i32 s25, 6144
        s_movk_i32 s26, 9216
        s_waitcnt lgkmcnt(0)
        s_load_dword s7, s[10:11], 0
        s_add_u32 s16, s12, s27
        s_addc_u32 s17, s13, 0
        s_movk_i32 s18, 12288
        s_mov_b32 s19, 0x20000
        s_add_u32 s20, s14, s27
        s_addc_u32 s21, s15, 0
        s_movk_i32 s22, 12288
        s_mov_b32 s23, 0x20000""")
        self.stamp(0)
        a("s_barrier")
        self.dstamp(0, 0, 0); self.dstamp(8, 80, 0)
        lims = P.get("lims", [3]*18 + [0]*6)
        so = ["0", "s24", "s25", "s26"]
        for i in range(24):
            isK = i < 12; ii = i % 12; t4, th = divmod(ii, 3)
            reg = (KR if isK else VR) + ii*4
            srd = "s[16:19]" if isK else "s[20:23]"
            lim = lims[i]
            if lim and i >= lim: a(f"s_waitcnt vmcnt({lim-1})")
            a(f"buffer_load_dwordx4 v[{reg}:{reg+3}], v1, {srd}, {so[t4]} offen offset:{th*128}{NT}")
        self.masks(MK)
        a("v_mov_b32 v5, 0xffffff00")
        a("s_waitcnt lgkmcnt(0)")
        self.tags()
        self.stamp(1)
        a("s_barrier")
        self.stamp(2)
        self.dstamp(1, 0, 0); self.dstamp(9, 80, 0)
        a(f"""v_and_b32 v2, 7, v0
        v_lshlrev_b32 v2, 4, v2
        v_add_u32 v2, {QTAB}, v2
        ds_read_b128 v[{QR}:{QR+3}], v2
        ds_read_b128 v[{QR+4}:{QR+7}], v2 offset:128
        ds_read_b128 v[{QR+8}:{QR+11}], v2 offset:256
        s_waitcnt vmcnt(12)
        s_waitcnt lgkmcnt(0)""")
        for t4 in range(4): a(f"v_dot2_f32_bf16 v{SC+t4}, v{KR+t4*12}, v{QR}, 0")
        for i in range(1, 12):
            for t4 in range(4): a(f"v_dot2c_f32_bf16 v{SC+t4}, v{KR+t4*12+i}, v{QR+i}")
        S4 = [SC+t for t in range(4)]
        self.dpp_sum(S4, ("quad_perm:[1,0,3,2]", "quad_perm:[2,3,0,1]", "row_half_mirror"))
        a("s_mov_b32 s28, 0x3d93cd3a")
        self.bf(SC, 4)
        for t4 in range(4): a(f"v_mul_f32 v{SC+t4}, s28, v{SC+t4}")
        self.bf(SC, 4)
        a(f"""v_max_f32 v2, v{SC}, v{SC+1}
        v_max3_f32 v2, v2, v{SC+2}, v{SC+3}
        v_max_f32_dpp v2, v2, v2 row_ror:8 {DPPM}
        v_mov_b32 v3, v2
        v_permlane16_swap_b32 v2, v3
        v_max_f32 v2, v2, v3
        v_mov_b32 v3, v2
        v_permlane32_swap_b32 v2, v3
        v_max_f32 v2, v2, v3
        s_lshl_b32 s29, s4, 2
        s_add_u32 s29, s29, {WMAX}
        v_mov_b32 v3, s29
        ds_write_b32 v3, v2
        s_waitcnt lgkmcnt(0)
        s_barrier
        v_mov_b32 v4, {WMAX}
        ds_read_b128 v[8:11], v4
        ds_read_b128 v[12:15], v4 offset:16
        s_waitcnt lgkmcnt(0)
        v_max3_f32 v8, v8, v9, v10
        v_max3_f32 v12, v12, v13, v14
        v_max3_f32 v8, v8, v11, v15
        v_max_f32 v6, v8, v12
        s_mov_b32 s28, {LOG2E}""")
        for t4 in range(4): a(f"v_sub_f32 v{SC+t4}, v{SC+t4}, v6")
        for t4 in range(4): a(f"v_mul_f32 v{SC+t4}, s28, v{SC+t4}")
        for t4 in range(4): a(f"v_exp_f32 v{SC+t4}, v{SC+t4}")
        a(f"""v_add_f32 v2, v{SC}, v{SC+1}
        v_add_f32 v3, v{SC+2}, v{SC+3}
        v_add_f32 v2, v2, v3
        v_add_f32_dpp v2, v2, v2 row_ror:8 {DPPM}
        v_mov_b32 v3, v2
        v_permlane16_swap_b32 v2, v3
        v_add_f32 v2, v2, v3
        v_mov_b32 v3, v2
        v_permlane32_swap_b32 v2, v3
        v_add_f32 v2, v2, v3
        v_mov_b32 v3, s29
        ds_write_b32 v3, v2 offset:32""")
        for t4 in range(4): a(f"v_cvt_pk_bf16_f32 v{SC+t4}, v{SC+t4}, v{SC+t4}")
        a(f"""v_and_b32 v2, 7, v0
        v_lshlrev_b32 v2, 5, v2
        v_bfe_u32 v3, v0, 4, 1
        v_lshlrev_b32 v3, 4, v3
        v_add_u32 v2, v2, v3
        v_lshrrev_b32 v3, 5, v0
        v_mul_u32_u24 v3, 768, v3
        v_add_u32 v2, v2, v3
        s_mul_i32 s29, s4, {PVW}
        s_add_u32 s29, s29, {RED}
        v_add_u32 v2, s29, v2
        s_lshl_b32 s29, s4, 3
        v_lshrrev_b32 v8, 3, v0
        v_add_u32 v8, s29, v8
        v_and_b32 v3, 7, v0
        v_mul_u32_u24 v3, {PVW}, v3
        v_lshlrev_b32 v4, 4, v8
        v_add_u32 v3, v3, v4
        v_add_u32 v3, {RED}, v3
        s_lshl_b32 s29, s5, 5
        s_add_u32 s29, s29, s6
        s_lshl_b32 s29, s29, 10
        s_add_u32 s29, s29, {WS_OP}
        v_add_u32 v4, s29, v4""")
        for t4 in range(4):
            ar = AOP + (t4 & 1)*4
            for r in range(4): a(f"v_and_b32 v{ar+r}, v{SC+t4}, v{MK+r}")
            for th in range(3):
                i = t4*3 + th
                a(f"s_waitcnt vmcnt({11-i})")
                c = "0" if t4 == 0 else f"v[{ACC+th*4}:{ACC+th*4+3}]"
                a(f"v_mfma_f32_16x16x32_bf16 v[{ACC+th*4}:{ACC+th*4+3}], v[{ar}:{ar+3}], v[{VR+i*4}:{VR+i*4+3}], {c}")
        self.stamp(3)
        a(f"""s_mov_b32 exec_lo, 0x00ff00ff
        s_mov_b32 exec_hi, 0xff00ff00
        ds_write_b128 v2, v[{ACC}:{ACC+3}]
        ds_write_b128 v2, v[{ACC+4}:{ACC+7}] offset:256
        ds_write_b128 v2, v[{ACC+8}:{ACC+11}] offset:512
        s_mov_b64 exec, -1
        s_waitcnt lgkmcnt(0)
        s_barrier
        s_cmp_ge_u32 s4, 6
        s_cbranch_scc1 L_A_ml
        ds_read_b128 v[8:11], v3
        ds_read_b128 v[12:15], v3 offset:768
        s_waitcnt lgkmcnt(0)""")
        for i in range(4): a(f"v_add_f32 v{8+i}, v{8+i}, v{12+i}")
        self.dpp_sum([8,9,10,11], ("quad_perm:[1,0,3,2]", "quad_perm:[2,3,0,1]", "row_half_mirror"))
        self.tagput(8)
        a(f"""s_mov_b32 exec_lo, 0x01010101
        s_mov_b32 exec_hi, 0x01010101
        global_store_dwordx4 v4, v[8:11], s[10:11] sc1
        s_mov_b64 exec, -1
        s_branch L_A_tail
        L_A_ml:
        s_cmp_eq_u32 s4, 6
        s_cbranch_scc0 L_A_tail
        v_mov_b32 v4, {WSUM}
        ds_read_b128 v[8:11], v4
        ds_read_b128 v[12:15], v4 offset:16
        s_add_u32 s29, s29, 768
        v_mov_b32 v4, s29
        s_waitcnt lgkmcnt(0)
        v_add_f32 v8, v8, v9
        v_add_f32 v10, v10, v11
        v_add_f32 v12, v12, v13
        v_add_f32 v14, v14, v15
        v_add_f32 v8, v8, v10
        v_add_f32 v12, v12, v14
        v_add_f32 v9, v8, v12
        v_mov_b32 v8, v6
        v_mov_b32 v10, v6
        v_mov_b32 v11, v9""")
        self.tagput(8)
        a(f"""s_mov_b64 exec, 1
        global_store_dwordx4 v4, v[8:11], s[10:11] sc1
        s_mov_b64 exec, -1
        L_A_tail:""")
        self.stamp(4)
        self.dstamp(2, 0, 0); self.dstamp(10, 80, 0)
        a("""s_cmp_lt_u32 s6, 10
        s_cbranch_scc1 L_WO
        s_cmp_lt_u32 s6, 16
        s_cbranch_scc1 L_FFN
        s_endpgm""")

    def gemv1x2(self, nt, W0, TB, acc0, aop):
        a = self.a; MK = self.MK
        a(f"""v_lshrrev_b32 v2, 3, v0
        v_lshlrev_b32 v2, 3, v2
        s_mul_i32 s29, s4, {nt//2*128}
        s_add_u32 s29, s29, {T1}
        v_add_u32 v2, s29, v2""")
        self._g_pre = None
    def gemv1x2_run(self, nt, W0, TB, acc0, aop):
        a = self.a; MK = self.MK
        for q in range(nt//2):
            for b in range(2):
                r = TB + (q*2+b)*2
                a(f"ds_read_b64 v[{r}:{r+1}], v2 offset:{q*128+b*64}")
        a(f"""v_and_b32 v3, 7, v0
        v_lshlrev_b32 v3, 5, v3
        v_bfe_u32 v4, v0, 4, 1
        v_lshlrev_b32 v4, 4, v4
        v_add_u32 v3, v3, v4
        v_lshrrev_b32 v4, 5, v0
        v_mul_u32_u24 v4, {R16}, v4
        v_add_u32 v3, v3, v4
        s_mul_i32 s29, s4, {2*R16}
        s_add_u32 s29, s29, {RED}
        v_add_u32 v3, s29, v3""")
        first = [True, True]
        seq = [(n, b) for n in range(nt) for b in range(2)]
        for idx, (n, b) in enumerate(seq):
            q, u = divmod(n, 2)
            if u == 0 and b == 0: a(f"s_waitcnt lgkmcnt({(nt//2 - 1 - q)*2})")
            ar = aop + (idx & 1)*4
            tv = TB + (q*2+b)*2 + u
            for r in range(4): a(f"v_and_b32 v{ar+r}, v{tv}, v{MK+r}")
            d = acc0 + 4*b
            c = "0" if first[b] else f"v[{d}:{d+3}]"
            first[b] = False
            a(f"v_mfma_f32_16x16x32_bf16 v[{d}:{d+3}], v[{ar}:{ar+3}], v[{W0+4*n}:{W0+4*n+3}], {c}")
        a(f"""s_mov_b32 exec_lo, 0x00ff00ff
        s_mov_b32 exec_hi, 0xff00ff00
        ds_write_b128 v3, v[{acc0}:{acc0+3}]
        ds_write_b128 v3, v[{acc0+4}:{acc0+7}] offset:256
        s_mov_b64 exec, -1
        s_waitcnt lgkmcnt(0)
        s_barrier""")

    def WO(self):
        a = self.a
        W0=16; OG=64; ML=80; GA=96; TB=64; GACC=112; GAOP=144
        a.label("L_WO")
        a(f"""v_lshlrev_b32 v2, 4, v0
        s_mul_i32 s29, s4, {12*1024}
        s_add_u32 s29, s29, {L_WO}
        v_add_u32 v2, s29, v2""")
        for n in range(12): a(f"ds_read_b128 v[{W0+4*n}:{W0+4*n+3}], v2 offset:{n*1024}")
        a(f"""s_lshl_b32 s29, s4, 2
        v_lshrrev_b32 v12, 4, v0
        v_add_u32 v12, s29, v12
        v_lshrrev_b32 v3, 4, v12
        v_lshlrev_b32 v3, 9, v3
        v_and_b32 v2, 15, v12
        v_lshlrev_b32 v2, 4, v2
        v_add_u32 v13, v2, v3
        s_lshr_b32 s29, s6, 1
        s_add_u32 s29, s29, 10
        s_lshl_b32 s29, s29, 12
        s_and_b32 s30, s6, 1
        s_lshl_b32 s30, s30, 8
        s_add_u32 s29, s29, s30
        s_add_u32 s29, s29, {WS_MODP}
        v_add_u32 v2, s29, v13""")
        self.gather([2], "L_WO_ga", GA)
        a(f"""s_lshr_b32 s29, s6, 1
        s_lshl_b32 s29, s29, 6
        s_and_b32 s30, s6, 1
        s_lshl_b32 s30, s30, 4
        s_add_u32 s29, s29, s30
        s_lshl_b32 s29, s29, 4
        s_mul_i32 s30, s5, 5120
        s_add_u32 s29, s29, s30
        s_add_u32 s29, s29, {WS_YP}
        v_add_u32 v13, s29, v13
        v_and_b32 v14, 15, v0
        v_mul_u32_u24 v14, {R16}, v14
        v_lshlrev_b32 v12, 4, v12
        v_add_u32 v14, v14, v12
        v_add_u32 v14, {RED}, v14
        s_and_b32 s29, s4, 3
        s_mul_i32 s29, s29, {12*128}
        s_lshr_b32 s30, s4, 2
        s_lshl_b32 s30, s30, 6
        s_add_u32 s29, s29, s30
        s_add_u32 s29, s29, {T1}
        v_lshrrev_b32 v15, 2, v0
        v_lshlrev_b32 v15, 7, v15
        v_and_b32 v3, 1, v0
        v_lshlrev_b32 v3, 5, v3
        v_add_u32 v15, v15, v3
        v_bfe_u32 v3, v0, 1, 1
        v_lshlrev_b32 v3, 2, v3
        v_add3_u32 v15, v15, v3, s29
        s_lshl_b32 s29, s5, 5
        s_lshl_b32 s30, s4, 2
        s_add_u32 s29, s29, s30
        s_lshl_b32 s29, s29, 10
        s_add_u32 s29, s29, {WS_OP}
        v_lshlrev_b32 v3, 4, v0
        v_add_u32 v3, s29, v3
        v_mov_b32 v4, s29
        s_mov_b32 s28, {LOG2E}
        s_mov_b32 exec_lo, -1
        s_mov_b32 exec_hi, 0x0000ffff
        L_WO_poll:""")
        for s in range(4): a(f"global_load_dwordx4 v[{OG+4*s}:{OG+4*s+3}], v3, s[10:11] offset:{s*1024} sc1")
        for s in range(4): a(f"global_load_dwordx4 v[{ML+4*s}:{ML+4*s+3}], v4, s[10:11] offset:{s*1024+768} sc1")
        a("s_waitcnt vmcnt(0)")
        for s in range(4): self.tagchk(OG+4*s, first=(s == 0))
        for s in range(4): self.tagchk(ML+4*s)
        self.poll_end("L_WO_poll")
        self.stamp(5)
        self.dstamp(3, 0, 0)
        for s in range(4): a(f"v_and_b32 v{ML+4*s}, v5, v{ML+4*s}")
        a(f"""v_max_f32 v6, v{ML}, v{ML+4}
        v_max3_f32 v6, v6, v{ML+8}, v{ML+12}""")
        for s in range(4): a(f"v_sub_f32 v{ML+4*s}, v{ML+4*s}, v6")
        for s in range(4): a(f"v_mul_f32 v{ML+4*s}, s28, v{ML+4*s}")
        for s in range(4): a(f"v_exp_f32 v{ML+4*s}, v{ML+4*s}")
        a(f"""v_mul_f32 v7, v{ML}, v{ML+1}
        v_fmac_f32 v7, v{ML+4}, v{ML+5}
        v_fmac_f32 v7, v{ML+8}, v{ML+9}
        v_fmac_f32 v7, v{ML+12}, v{ML+13}
        v_rcp_f32 v7, v7""")
        for i in range(4): a(f"v_mul_f32 v{8+i}, v{ML}, v{OG+i}")
        for s in range(1, 4):
            for i in range(4): a(f"v_fmac_f32 v{8+i}, v{ML+4*s}, v{OG+4*s+i}")
        for i in range(4): a(f"v_mul_f32 v{8+i}, v{8+i}, v7")
        for i in range(4): a(f"v_cvt_pk_bf16_f32 v{8+i}, v{8+i}, v{8+i}")
        a(f"""ds_write2_b32 v15, v8, v9 offset0:0 offset1:2
        ds_write2_b32 v15, v10, v11 offset0:4 offset1:6
        s_mov_b64 exec, -1""")
        self.gemv1x2(12, W0, TB, GACC, GAOP)
        a("""s_waitcnt lgkmcnt(0)
        s_barrier""")
        self.stamp(9)
        self.gemv1x2_run(12, W0, TB, GACC, GAOP)
        self.stamp(10)
        a("ds_read_b128 v[8:11], v14")
        a("s_waitcnt lgkmcnt(0)")
        self.dpp_sum([8,9,10,11], ("row_ror:8", "row_ror:4", "row_ror:2", "row_ror:1"))
        for i in range(4): a(f"v_mul_f32 v{8+i}, v{8+i}, v{GA+i}")
        self.tagput(8)
        a(f"""s_mov_b32 exec_lo, 0x00010001
        s_mov_b32 exec_hi, 0x00010001
        global_store_dwordx4 v13, v[8:11], s[10:11] sc1""")
        self.stamp(6)
        self.dstamp(4, 0, 0)
        a("s_endpgm")

    def FFN(self):
        a = self.a; MK = self.MK
        W0=16; DW=64; YG=128; SB=96; CB=100; GB=152
        a.label("L_FFN")
        a(f"""s_load_dwordx2 s[12:13], s[0:1], 0
        s_load_dwordx2 s[14:15], s[0:1], 88
        v_lshlrev_b32 v2, 4, v0
        s_mul_i32 s29, s4, {10*1024}
        s_add_u32 s29, s29, {L_GU}
        v_add_u32 v3, s29, v2""")
        for n in range(10): a(f"ds_read_b128 v[{W0+4*n}:{W0+4*n+3}], v3 offset:{n*1024}")
        a(f"""s_mul_i32 s31, s5, 6
        s_add_u32 s31, s31, s6
        s_sub_u32 s31, s31, 10
        s_cmp_ge_u32 s4, 5
        s_cbranch_scc1 L_FFN_w5
        s_lshl_b32 s29, s4, 13
        s_add_u32 s29, s29, {L_DOWN}
        v_add_u32 v3, s29, v2
        s_waitcnt lgkmcnt(0)""")
        for n in range(8): a(f"ds_read_b128 v[{DW+4*n}:{DW+4*n+3}], v3 offset:{n*1024}")
        a(f"""v_lshrrev_b32 v3, 5, v0
        v_mul_u32_u24 v3, 1280, v3
        v_and_b32 v4, 31, v0
        v_lshlrev_b32 v4, 3, v4
        v_add_u32 v3, v3, v4
        s_lshl_b32 s29, s4, 8
        v_add_u32 v3, s29, v3
        global_load_dwordx2 v[56:57], v3, s[12:13]
        s_add_u32 s29, s4, 15
        s_lshl_b32 s29, s29, 12
        s_add_u32 s29, s29, {WS_MODP}
        v_add_u32 v3, s29, v2
        v_add_u32 v4, {5*4096}, v3""")
        self.gather([3, 4], "L_FFN_sc", 128)
        for i in range(4): a(f"v_mov_b32 v{SB+i}, v{128+i}")
        for i in range(4): a(f"v_add_f32 v{CB+i}, 1.0, v{144+i}")
        self.bf(CB, 4)
        a(f"""v_lshlrev_b32 v58, 16, v56
        v_and_b32 v59, 0xffff0000, v56
        v_lshlrev_b32 v60, 16, v57
        v_and_b32 v61, 0xffff0000, v57
        s_lshl_b32 s29, s4, 10
        v_add_u32 v12, s29, v2
        v_add_u32 v12, {L_X1}, v12
        s_add_u32 s29, s29, {T1}
        v_bfe_u32 v13, v0, 2, 3
        v_lshlrev_b32 v13, 7, v13
        v_lshrrev_b32 v4, 5, v0
        v_lshlrev_b32 v4, 6, v4
        v_add_u32 v13, v13, v4
        v_and_b32 v4, 1, v0
        v_lshlrev_b32 v4, 5, v4
        v_add_u32 v13, v13, v4
        v_bfe_u32 v4, v0, 1, 1
        v_lshlrev_b32 v4, 2, v4
        v_add3_u32 v13, v13, v4, s29
        v_lshrrev_b32 v15, 5, v0
        v_mul_u32_u24 v15, 40, v15
        v_add_u32 v15, {STAT}, v15
        s_lshl_b32 s29, s4, 3
        v_add_u32 v14, s29, v15
        s_lshl_b32 s29, s4, 10
        s_add_u32 s29, s29, {WS_YP}
        v_add_u32 v3, s29, v2
        s_mov_b32 s30, 5120
        L_FFN_poll:
        v_mov_b32 v4, v3""")
        for ks in range(8):
            a(f"global_load_dwordx4 v[{YG+4*ks}:{YG+4*ks+3}], v4, s[10:11] sc1")
            if ks < 7: a("v_add_u32 v4, s30, v4")
        a("s_waitcnt vmcnt(0)")
        for ks in range(8): self.tagchk(YG+4*ks, first=(ks == 0))
        self.poll_end("L_FFN_poll")
        self.stamp(5)
        self.dstamp(11, 80, 0)
        for i in range(4):
            a(f"v_add_f32 v{YG+i}, v{YG+i}, v{YG+4+i}")
            a(f"v_add_f32 v{YG+8+i}, v{YG+8+i}, v{YG+12+i}")
            a(f"v_add_f32 v{YG+16+i}, v{YG+16+i}, v{YG+20+i}")
            a(f"v_add_f32 v{YG+24+i}, v{YG+24+i}, v{YG+28+i}")
        for i in range(4):
            a(f"v_add_f32 v{YG+i}, v{YG+i}, v{YG+8+i}")
            a(f"v_add_f32 v{YG+16+i}, v{YG+16+i}, v{YG+24+i}")
        for i in range(4): a(f"v_add3_u32 v0, v0, 0, 0") if False else None
        for i in range(4): a(f"v_add_f32 v{YG+i}, v{YG+i}, v{YG+16+i}")
        for i in range(4): a(f"v_add_f32 v{8+i}, v{58+i}, v{YG+i}")
        self.bf(8, 4)
        a(f"""ds_write_b128 v12, v[8:11]
        v_add_f32 v{YG}, v8, v9
        v_add_f32 v{YG+2}, v10, v11
        v_mul_f32 v{YG+1}, v8, v8
        v_add_f32 v{YG}, v{YG}, v{YG+2}
        v_fmac_f32 v{YG+1}, v9, v9
        v_fmac_f32 v{YG+1}, v10, v10
        v_fmac_f32 v{YG+1}, v11, v11""")
        self.dpp_sum([YG, YG+1], ("row_ror:8", "row_ror:4", "row_ror:2", "row_ror:1"))
        a(f"""v_mov_b32 v{YG+2}, v{YG}
        v_mov_b32 v{YG+3}, v{YG+1}
        v_permlane16_swap_b32 v{YG}, v{YG+2}
        v_permlane16_swap_b32 v{YG+1}, v{YG+3}
        v_add_f32 v{YG}, v{YG}, v{YG+2}
        v_add_f32 v{YG+1}, v{YG+1}, v{YG+3}
        s_mov_b32 exec_lo, 1
        s_mov_b32 exec_hi, 1
        ds_write_b64 v14, v[{YG}:{YG+1}]
        s_mov_b64 exec, -1
        s_branch L_FFN_b1
        L_FFN_w5:
        s_cmp_eq_u32 s4, 5
        s_cbranch_scc0 L_FFN_b1
        s_cmp_ge_u32 s31, 40
        s_cbranch_scc1 L_FFN_b1
        s_lshl_b32 s33, s31, 3
        v_and_b32 v2, 7, v0
        v_add_u32 v3, s33, v2
        v_lshrrev_b32 v4, 6, v3
        v_lshlrev_b32 v4, 12, v4
        v_and_b32 v3, 63, v3
        v_lshlrev_b32 v3, 4, v3
        v_add_u32 v3, v3, v4
        v_add_u32 v3, {WS_MODP + 25*4096}, v3""")
        self.gather([3], "L_FFN_gb", GB)
        a(f"""L_FFN_b1:
        s_waitcnt lgkmcnt(0)
        s_barrier
        s_cmp_ge_u32 s4, 5
        s_cbranch_scc1 L_FFN_b2
        ds_read2_b64 v[{YG+8}:{YG+11}], v15 offset0:0 offset1:1
        ds_read2_b64 v[{YG+12}:{YG+15}], v15 offset0:2 offset1:3
        ds_read_b64 v[{YG+16}:{YG+17}], v15 offset:32
        s_mov_b32 s28, 0x3acccccd
        s_waitcnt lgkmcnt(0)
        v_add_f32 v{YG}, v{YG+8}, v{YG+10}
        v_add_f32 v{YG+1}, v{YG+9}, v{YG+11}
        v_add_f32 v{YG+2}, v{YG+12}, v{YG+14}
        v_add_f32 v{YG+3}, v{YG+13}, v{YG+15}
        v_add_f32 v{YG}, v{YG}, v{YG+16}
        v_add_f32 v{YG+1}, v{YG+1}, v{YG+17}
        v_add_f32 v{YG}, v{YG}, v{YG+2}
        v_add_f32 v{YG+1}, v{YG+1}, v{YG+3}
        v_mul_f32 v{YG}, s28, v{YG}
        v_mul_f32 v{YG+1}, s28, v{YG+1}
        v_fma_f32 v{YG+1}, -v{YG}, v{YG}, v{YG+1}
        v_max_f32 v{YG+1}, 0, v{YG+1}""")
        self.bf(YG, 2)
        a(f"v_add_f32 v{YG+1}, 0x3727c5ac, v{YG+1}")
        for i in range(4): a(f"v_sub_f32 v{8+i}, v{8+i}, v{YG}")
        self.bf(YG+1)
        a(f"v_sqrt_f32 v{YG+1}, v{YG+1}")
        self.bf(8, 4)
        self.bf(YG+1)
        a(f"v_rcp_f32 v{YG+1}, v{YG+1}")
        for i in range(4): a(f"v_mul_f32 v{8+i}, v{8+i}, v{YG+1}")
        self.bf(8, 4)
        for i in range(4): a(f"v_mul_f32 v{8+i}, v{8+i}, v{CB+i}")
        self.bf(8, 4)
        for i in range(4): a(f"v_add_f32 v{8+i}, v{8+i}, v{SB+i}")
        for i in range(4): a(f"v_cvt_pk_bf16_f32 v{8+i}, v{8+i}, v{8+i}")
        a(f"""ds_write2_b32 v13, v8, v9 offset0:0 offset1:2
        ds_write2_b32 v13, v10, v11 offset0:4 offset1:6
        L_FFN_b2:""")
        self.gemv1x2(10, W0, 96, 128, 144)
        a(f"""s_lshr_b32 s29, s4, 2
        s_lshl_b32 s29, s29, 4
        s_and_b32 s30, s4, 3
        s_lshl_b32 s30, s30, 1
        s_add_u32 s29, s29, s30
        v_bfe_u32 v14, v0, 4, 1
        v_lshlrev_b32 v14, 3, v14
        v_lshrrev_b32 v3, 5, v0
        v_add3_u32 v14, v14, v3, s29
        v_lshlrev_b32 v14, 4, v14
        v_and_b32 v4, 15, v0
        v_mul_u32_u24 v4, {R16}, v4
        v_add_u32 v14, v14, v4
        v_add_u32 v14, {RED}, v14
        v_add_u32 v3, s30, v3
        v_lshrrev_b32 v4, 2, v3
        v_lshlrev_b32 v4, 7, v4
        v_and_b32 v3, 3, v3
        v_lshlrev_b32 v3, 2, v3
        v_add_u32 v15, v3, v4
        v_and_b32 v12, 3, v0
        v_lshlrev_b32 v3, 5, v12
        v_add_u32 v15, v15, v3
        s_lshr_b32 s29, s4, 2
        s_lshl_b32 s29, s29, 4
        s_add_u32 s29, s29, {T2}
        v_add_u32 v15, s29, v15
        s_waitcnt lgkmcnt(0)
        s_barrier""")
        self.stamp(9)
        self.gemv1x2_run(10, W0, 96, 128, 144)
        self.stamp(10)
        a("""ds_read_b128 v[8:11], v14
        v_cmp_eq_u32 s[34:35], 1, v12
        v_cmp_eq_u32 s[36:37], 2, v12
        v_cmp_eq_u32 s[38:39], 3, v12
        s_mov_b32 s28, 0x3d372713
        s_waitcnt lgkmcnt(0)""")
        self.dpp_sum([8,9,10,11], ("row_ror:8", "row_ror:4", "row_ror:2", "row_ror:1"))
        a("""v_cndmask_b32 v8, v8, v9, s[34:35]
        v_cndmask_b32 v8, v8, v10, s[36:37]
        v_cndmask_b32 v8, v8, v11, s[38:39]
        v_mov_b32 v12, v8
        v_permlane16_swap_b32 v8, v12""")
        self.bf(8); self.bf(12)
        a("""v_mul_f32 v9, v8, v8
        v_mul_f32 v9, v9, v8
        v_fma_f32 v9, v9, s28, v8
        v_mul_f32 v9, 0xc0135761, v9
        v_exp_f32 v9, v9
        v_add_f32 v9, 1.0, v9
        v_rcp_f32 v9, v9
        v_mul_f32 v8, v8, v9""")
        self.bf(8)
        a(f"""v_mul_f32 v8, v8, v12
        v_cvt_pk_bf16_f32 v8, v8, v8
        s_mov_b32 exec_lo, 0xf
        s_mov_b32 exec_hi, 0xf
        ds_write_b32 v15, v8
        s_mov_b64 exec, -1
        v_lshrrev_b32 v2, 4, v0
        v_lshlrev_b32 v2, 5, v2
        v_bfe_u32 v3, v0, 3, 1
        v_lshlrev_b32 v3, 4, v3
        v_add_u32 v2, v2, v3
        v_add_u32 v2, {T2}, v2
        s_mul_i32 s29, s31, 5120
        s_lshl_b32 s30, s4, 10
        s_add_u32 s29, s29, s30
        s_add_u32 s29, s29, {WS_DP}
        v_lshrrev_b32 v4, 5, v0
        v_lshlrev_b32 v4, 9, v4
        v_and_b32 v3, 15, v0
        v_lshlrev_b32 v3, 5, v3
        v_add_u32 v4, v4, v3
        v_bfe_u32 v3, v0, 4, 1
        v_lshlrev_b32 v3, 4, v3
        v_add3_u32 v4, v4, v3, s29
        s_waitcnt lgkmcnt(0)
        s_barrier
        s_cmp_ge_u32 s4, 5
        s_cbranch_scc1 L_FIN
        ds_read_b128 v[96:99], v2
        ds_read_b128 v[100:103], v2 offset:128
        s_waitcnt lgkmcnt(1)""")
        for n in range(8):
            if n == 4: a("s_waitcnt lgkmcnt(0)")
            ar = 144 + (n & 1)*4
            for r in range(4): a(f"v_and_b32 v{ar+r}, v{96+n}, v{MK+r}")
            c = "0" if n == 0 else "v[128:131]"
            a(f"v_mfma_f32_16x16x32_bf16 v[128:131], v[{ar}:{ar+3}], v[{DW+4*n}:{DW+4*n+3}], {c}")
        self.tagput(128)
        a("global_store_dwordx4 v4, v[128:131], s[10:11] sc1")
        self.stamp(6)
        self.dstamp(12, 80, 0)
        a("s_endpgm")
        a(f"""L_FIN:
        s_cmp_eq_u32 s4, 5
        s_cbranch_scc0 L_exit
        s_cmp_ge_u32 s31, 40
        s_cbranch_scc1 L_exit
        v_lshrrev_b32 v2, 3, v0
        v_mul_u32_u24 v2, {6*5120}, v2
        v_and_b32 v3, 7, v0
        v_lshlrev_b32 v3, 4, v3
        v_add_u32 v2, v2, v3
        s_lshl_b32 s29, s31, 7
        s_add_u32 s29, s29, {WS_DP}
        v_add_u32 v2, s29, v2
        s_lshl_b32 s29, s31, 7
        s_add_u32 s29, s29, {L_X1}
        v_add_u32 v4, s29, v3
        ds_read_b128 v[40:43], v4
        s_lshl_b32 s29, s31, 3
        v_add_u32 v8, s29, v0
        v_lshrrev_b32 v3, 6, v8
        v_lshlrev_b32 v3, 8, v3
        v_bfe_u32 v4, v8, 5, 1
        v_mul_u32_u24 v4, 1280, v4
        v_add_u32 v3, v3, v4
        v_and_b32 v4, 31, v8
        v_lshlrev_b32 v4, 3, v4
        v_add_u32 v8, v3, v4
        s_mov_b32 s30, 5120
        L_FIN_poll:
        v_mov_b32 v4, v2""")
        for i in range(6):
            a(f"global_load_dwordx4 v[{16+4*i}:{19+4*i}], v4, s[10:11] sc1")
            if i < 5: a("v_add_u32 v4, s30, v4")
        a("s_waitcnt vmcnt(0)")
        for i in range(6): self.tagchk(16+4*i, first=(i == 0))
        self.poll_end("L_FIN_poll")
        self.stamp(7)
        for i in range(4):
            a(f"v_add_f32 v{16+i}, v{16+i}, v{20+i}")
            a(f"v_add_f32 v{24+i}, v{24+i}, v{28+i}")
            a(f"v_add_f32 v{32+i}, v{32+i}, v{36+i}")
        for i in range(4): a(f"v_add_f32 v{16+i}, v{16+i}, v{24+i}")
        for i in range(4): a(f"v_add_f32 v{16+i}, v{16+i}, v{32+i}")
        self.dpp_sum([16,17,18,19], ("row_ror:8",))
        for i in range(4): a(f"v_mov_b32 v{20+i}, v{16+i}")
        for i in range(4): a(f"v_permlane16_swap_b32 v{16+i}, v{20+i}")
        for i in range(4): a(f"v_add_f32 v{16+i}, v{16+i}, v{20+i}")
        for i in range(4): a(f"v_mov_b32 v{20+i}, v{16+i}")
        for i in range(4): a(f"v_permlane32_swap_b32 v{16+i}, v{20+i}")
        for i in range(4): a(f"v_add_f32 v{16+i}, v{16+i}, v{20+i}")
        a("s_waitcnt lgkmcnt(0)")
        self.bf(16, 4)
        for i in range(4): a(f"v_mul_f32 v{16+i}, v{16+i}, v{GB+i}")
        self.bf(16, 4)
        for i in range(4): a(f"v_add_f32 v{16+i}, v{16+i}, v{40+i}")
        a(f"""v_cvt_pk_bf16_f32 v16, v16, v17
        v_cvt_pk_bf16_f32 v17, v18, v19
        s_mov_b64 exec, 0xff
        global_store_dwordx2 v8, v[16:17], s[14:15]
        s_cmp_eq_u32 s31, 0
        s_cbranch_scc0 L_FIN_done
        s_mov_b64 exec, 1
        v_mov_b32 v2, 0
        v_mov_b32 v3, s7
        global_store_dword v2, v3, s[10:11]
        L_FIN_done:""")
        self.stamp(8)
        self.dstamp(13, 80, 5)
        a("s_endpgm")

    def qunit(self, ureg, d1, d2):
        self.a(f"""s_mul_i32 s{d2}, s{ureg}, 43
        s_lshr_b32 s{d2}, s{d2}, 8
        s_mul_i32 s{d1}, s{d2}, 6
        s_sub_u32 s{d1}, s{ureg}, s{d1}
        s_mul_i32 s3, s5, 6
        s_add_u32 s{d1}, s{d1}, s3""")
    def unit_dma(self, treg, i1, i2, ldsbase, lab, lim):
        a = self.a
        a(f"""s_cmp_eq_u32 s{treg}, 2
        s_cselect_b32 s40, s12, s14
        s_cselect_b32 s41, s13, s15
        s_mov_b32 s42, 4915200
        s_cselect_b32 s42, 7864320, s42
        s_mov_b32 s43, 0x20000
        s_movk_i32 s44, 7680
        s_cselect_b32 s44, 12288, s44
        v_lshrrev_b32 v2, 4, v0
        v_mul_lo_u32 v2, s44, v2
        v_and_b32 v3, 15, v0
        v_lshlrev_b32 v3, 4, v3
        v_add_u32 v2, v2, v3
        s_mul_i32 s45, s{i2}, 160
        s_mul_i32 s45, s45, s44
        s_lshl_b32 s46, s{i1}, 8
        s_add_u32 s45, s45, s46
        s_lshl_b32 s44, s44, 2
        s_mov_b32 m0, {ldsbase}
        s_movk_i32 s46, 40
        {lab}:
        buffer_load_dwordx4 v2, s[40:43], s45 offen{self.NT} lds
        s_add_u32 s45, s45, s44
        s_add_u32 m0, m0, 1024""")
        if lim: a(f"s_waitcnt vmcnt({lim-1})")
        a(f"""s_sub_u32 s46, s46, 1
        s_cmp_lg_u32 s46, 0
        s_cbranch_scc1 {lab}""")

    def L_wave(self):
        a = self.a; P = self.P; NT = self.NT
        limL = P.get("limL", 12)
        a.label("L_L")
        a(f"""s_setprio {P.get("prioL",2)}
        s_cmp_lt_u32 s6, 10
        s_cbranch_scc1 L_L_wo
        s_cmp_lt_u32 s6, 16
        s_cbranch_scc1 L_L_ffn
        s_sub_u32 s20, s6, 16
        s_cmp_lt_u32 s20, 10
        s_cbranch_scc1 L_L_mod
        s_cmp_lt_u32 s20, 13
        s_cbranch_scc1 L_exit
        s_add_u32 s21, s20, 8
        s_mov_b32 s30, 2""")
        self.qunit(21, 31, 32)
        a(f"""s_branch L_L_unit
        L_L_mod:
        s_mul_i32 s21, s5, 10
        s_add_u32 s21, s21, s20
        s_lshr_b32 s31, s21, 2
        s_add_u32 s31, s31, 10
        s_and_b32 s32, s21, 3
        s_mov_b32 s30, 1
        L_L_unit:
        s_load_dwordx2 s[12:13], s[0:1], 24
        s_load_dwordx2 s[14:15], s[0:1], 80
        s_waitcnt lgkmcnt(0)
        s_barrier""")
        self.unit_dma(30, 31, 32, L_SLOT1, "L_L_unit_loop", limL)
        a(f"""s_waitcnt vmcnt(0)
        v_mov_b32 v2, {FLAGL}
        v_mov_b32 v3, 1
        ds_write_b32 v2, v3
        s_waitcnt lgkmcnt(0)
        s_endpgm
        L_L_wo:
        s_load_dwordx2 s[40:41], s[0:1], 32
        v_lshrrev_b32 v2, 3, v0
        v_mul_u32_u24 v2, 1280, v2
        v_and_b32 v3, 7, v0
        v_lshlrev_b32 v3, 4, v3
        v_add_u32 v2, v2, v3
        s_mov_b32 s42, 7864320
        s_mov_b32 s43, 0x20000
        s_mul_i32 s45, s5, {768*1280}
        s_lshl_b32 s46, s6, 7
        s_add_u32 s45, s45, s46
        s_mov_b32 m0, {L_WO}
        s_movk_i32 s46, 96
        s_waitcnt lgkmcnt(0)
        s_barrier
        L_L_wo_loop:
        buffer_load_dwordx4 v2, s[40:43], s45 offen{NT} lds
        s_add_u32 s45, s45, 10240
        s_add_u32 m0, m0, 1024
        s_waitcnt vmcnt({limL-1})
        s_sub_u32 s46, s46, 1
        s_cmp_lg_u32 s46, 0
        s_cbranch_scc1 L_L_wo_loop
        s_waitcnt vmcnt(0)""")
        self.stamp(1)
        a(f"""s_endpgm
        L_L_ffn:
        s_load_dwordx4 s[12:15], s[0:1], 48
        s_load_dwordx2 s[40:41], s[0:1], 64
        s_mul_i32 s31, s5, 6
        s_add_u32 s31, s31, s6
        s_sub_u32 s31, s31, 10
        v_lshrrev_b32 v2, 3, v0
        v_mul_u32_u24 v2, 3072, v2
        v_and_b32 v3, 3, v0
        v_lshlrev_b32 v3, 4, v3
        v_add_u32 v2, v2, v3
        s_lshl_b32 s29, s31, 6
        v_add_u32 v2, s29, v2
        v_bfe_u32 v3, v0, 2, 1
        v_cmp_eq_u32 vcc, 1, v3
        s_waitcnt lgkmcnt(0)
        v_mov_b32 v4, s12
        v_mov_b32 v5, s13
        v_mov_b32 v6, s14
        v_mov_b32 v7, s15
        v_cndmask_b32 v4, v4, v6, vcc
        v_cndmask_b32 v5, v5, v7, vcc
        v_add_co_u32 v4, vcc, v4, v2
        v_addc_co_u32 v5, vcc, 0, v5, vcc
        s_mov_b32 m0, {L_GU}
        s_movk_i32 s46, 80
        s_movk_i32 s44, 24576
        s_barrier
        L_L_gu_loop:
        global_load_lds_dwordx4 v[4:5], off{NT}
        v_add_co_u32 v4, vcc, s44, v4
        v_addc_co_u32 v5, vcc, 0, v5, vcc
        s_add_u32 m0, m0, 1024
        s_waitcnt vmcnt({limL-1})
        s_sub_u32 s46, s46, 1
        s_cmp_lg_u32 s46, 0
        s_cbranch_scc1 L_L_gu_loop
        v_lshrrev_b32 v2, 4, v0
        v_mul_u32_u24 v2, 1280, v2
        v_and_b32 v3, 15, v0
        v_lshlrev_b32 v3, 4, v3
        v_add_u32 v2, v2, v3
        s_mov_b32 s42, 1966080
        s_mov_b32 s43, 0x20000
        s_mul_i32 s47, s31, {32*1280}
        s_mov_b32 s48, 0
        L_L_dn_outer:
        s_add_u32 s45, s47, s48
        s_movk_i32 s46, 8
        L_L_dn_loop:
        buffer_load_dwordx4 v2, s[40:43], s45 offen{NT} lds
        s_add_u32 s45, s45, 5120
        s_add_u32 m0, m0, 1024
        s_waitcnt vmcnt({limL-1})
        s_sub_u32 s46, s46, 1
        s_cmp_lg_u32 s46, 0
        s_cbranch_scc1 L_L_dn_loop
        s_add_u32 s48, s48, 256
        s_cmp_lt_u32 s48, 1280
        s_cbranch_scc1 L_L_dn_outer
        s_waitcnt vmcnt(0)""")
        self.stamp(1)
        a("s_endpgm")

    def F_wave(self):
        a = self.a; P = self.P
        FM = 124
        a.label("L_F")
        a(f"""s_setprio 3
        s_load_dwordx2 s[12:13], s[0:1], 24
        s_load_dwordx2 s[14:15], s[0:1], 80
        s_load_dwordx2 s[16:17], s[0:1], 72
        s_load_dwordx2 s[18:19], s[0:1], 0
        v_mov_b32 v2, {FLAGL}
        v_mov_b32 v3, 0
        ds_write_b32 v2, v3
        s_mov_b32 s20, 0
        s_mov_b32 s25, 0
        s_mov_b32 s39, 0
        s_cmp_lt_u32 s6, 10
        s_cbranch_scc1 L_F_wo
        s_cmp_lt_u32 s6, 16
        s_cbranch_scc1 L_F_dec_done
        s_sub_u32 s33, s6, 16
        s_mul_i32 s34, s5, 10
        s_add_u32 s34, s34, s33
        s_lshr_b32 s26, s34, 2
        s_add_u32 s26, s26, 10
        s_and_b32 s27, s34, 3
        s_mov_b32 s28, {L_SLOT1}
        s_mov_b32 s23, {L_SLOT0}
        s_cmp_lt_u32 s33, 5
        s_cbranch_scc0 L_F_d2
        s_mul_i32 s34, s5, 5
        s_add_u32 s34, s34, s33
        s_mov_b32 s20, 1
        s_lshr_b32 s21, s34, 2
        s_and_b32 s22, s34, 3
        s_mov_b32 s25, 1
        s_mov_b32 s39, 1
        s_branch L_F_dec_done
        L_F_d2:
        s_add_u32 s34, s33, 5""")
        self.qunit(34, 21, 22)
        a(f"""s_mov_b32 s20, 2
        s_cmp_lt_u32 s33, 10
        s_cselect_b32 s25, 1, 0
        s_cmp_lt_u32 s33, 13
        s_cbranch_scc1 L_F_dec_done
        s_mov_b32 s25, 2
        s_add_u32 s26, s21, 3
        s_mov_b32 s27, s22
        s_branch L_F_dec_done
        L_F_wo:
        s_mov_b32 s34, s6""")
        self.qunit(34, 21, 22)
        a(f"""s_mov_b32 s20, 2
        s_mov_b32 s23, {L_SLOT0}
        L_F_dec_done:
        s_waitcnt lgkmcnt(0)
        s_load_dword s7, s[10:11], 0
        s_cmp_eq_u32 s20, 0
        s_cbranch_scc1 L_F_nodma
        v_lshrrev_b32 v2, 5, v0
        v_mul_u32_u24 v2, 1280, v2
        v_and_b32 v3, 31, v0
        v_lshlrev_b32 v3, 3, v3
        v_add_u32 v2, v2, v3""")
        for k in range(5): a(f"global_load_dwordx2 v[{8+2*k}:{9+2*k}], v2, s[18:19] offset:{k*256}")
        a(f"""s_cmp_eq_u32 s20, 2
        s_cselect_b32 s36, s18, s16
        s_cselect_b32 s37, s19, s17
        s_mul_i32 s33, s22, 320
        v_lshlrev_b32 v2, 3, v0
        v_add_u32 v2, s33, v2
        s_mov_b32 exec_lo, -1
        s_mov_b32 exec_hi, 0xff
        global_load_dwordx2 v[18:19], v2, s[36:37]
        global_load_dwordx2 v[20:21], v2, s[36:37] offset:1280
        s_mov_b64 exec, -1""")
        self.unit_dma(20, 21, 22, L_SLOT0, "L_F_dma_loop", 0)
        a("L_F_nodma:")
        self.masks(FM)
        a("v_mov_b32 v5, 0xffffff00")
        a("s_waitcnt lgkmcnt(0)")
        self.tags()
        self.stamp(0)
        a(f"""s_cmp_eq_u32 s39, 1
        s_cbranch_scc1 L_F_nobar
        s_barrier
        L_F_nobar:
        s_mov_b32 s35, -1
        s_mov_b32 s38, 0
        s_cmp_eq_u32 s20, 0
        s_cbranch_scc1 L_F_gath
        s_waitcnt vmcnt(40)
        L_F_job:
        s_cmp_eq_u32 s20, 2
        s_cbranch_scc1 L_F_prepQ
        ; ---- MOD prep: silu(c slice in v18..21)""")
        for b in range(2):
            s0 = 18+2*b; d = 24+4*b
            a(f"""v_lshlrev_b32 v{d}, 16, v{s0}
            v_and_b32 v{d+1}, 0xffff0000, v{s0}
            v_lshlrev_b32 v{d+2}, 16, v{s0+1}
            v_and_b32 v{d+3}, 0xffff0000, v{s0+1}""")
        for i in range(8): a(f"v_mul_f32 v{32+i}, 0xbfb8aa3b, v{24+i}")
        for i in range(8): a(f"v_exp_f32 v{32+i}, v{32+i}")
        for i in range(8): a(f"v_add_f32 v{32+i}, 1.0, v{32+i}")
        for i in range(8): a(f"v_rcp_f32 v{32+i}, v{32+i}")
        for i in range(8): a(f"v_mul_f32 v{112+i}, v{24+i}, v{32+i}")
        a("""s_mov_b32 s35, -1
        s_mov_b32 exec_lo, -1
        s_mov_b32 exec_hi, 0xff
        s_branch L_F_table
        L_F_prepQ:
        s_cmp_eq_u32 s35, s22
        s_cbranch_scc1 L_F_gemv
        s_mov_b32 s35, s22""")
        for k in range(10):
            a(f"v_lshlrev_b32 v{24+2*k}, 16, v{8+k}")
            a(f"v_and_b32 v{25+2*k}, 0xffff0000, v{8+k}")
        a("v_add_f32 v44, v24, v25")
        a("v_add_f32 v45, v26, v27")
        for k in range(4, 20, 2):
            a(f"v_add_f32 v44, v44, v{24+k}")
            a(f"v_add_f32 v45, v45, v{25+k}")
        a("v_add_f32 v44, v44, v45")
        def red32(r, t):
            self.dpp_sum([r], ("row_ror:8", "row_ror:4", "row_ror:2", "row_ror:1"))
            a(f"""v_mov_b32 v{t}, v{r}
            v_permlane16_swap_b32 v{r}, v{t}
            v_add_f32 v{r}, v{r}, v{t}""")
        red32(44, 45)
        a("v_mul_f32 v44, 0x3acccccd, v44")
        for k in range(20): a(f"v_sub_f32 v{24+k}, v{24+k}, v44")
        a("v_mul_f32 v46, v24, v24")
        a("v_mul_f32 v47, v25, v25")
        for k in range(2, 20, 2):
            a(f"v_fmac_f32 v46, v{24+k}, v{24+k}")
            a(f"v_fmac_f32 v47, v{25+k}, v{25+k}")
        a("v_add_f32 v46, v46, v47")
        red32(46, 45)
        a("v_mul_f32 v46, 0x3acccccd, v46")
        self.bf(44); self.bf(46)
        a("v_add_f32 v46, 0x3727c5ac, v46")
        self.bf(46)
        a("v_sqrt_f32 v46, v46")
        self.bf(46)
        a("v_rcp_f32 v46, v46")
        a(f"""v_readlane_b32 s48, v44, 0
        v_readlane_b32 s49, v46, 0
        v_readlane_b32 s50, v44, 32
        v_readlane_b32 s51, v46, 32
        s_mul_i32 s33, s22, 160
        v_lshlrev_b32 v2, 2, v0
        v_add_u32 v2, s33, v2
        v_lshrrev_b32 v3, 7, v2
        v_lshlrev_b32 v3, 12, v3
        v_and_b32 v2, 127, v2
        v_lshlrev_b32 v2, 2, v2
        v_add_u32 v2, v2, v3
        v_add_u32 v2, {WS_MODP}, v2
        v_add_u32 v3, {5*4096}, v2
        s_mov_b32 exec_lo, -1
        s_mov_b32 exec_hi, 0xff""")
        for b in range(2):
            t = 24+4*b; xs = 18+2*b
            a(f"""v_lshlrev_b32 v{t}, 16, v{xs}
            v_and_b32 v{t+1}, 0xffff0000, v{xs}
            v_lshlrev_b32 v{t+2}, 16, v{xs+1}
            v_and_b32 v{t+3}, 0xffff0000, v{xs+1}""")
        for b in range(2):
            t = 24+4*b
            for i in range(4): a(f"v_subrev_f32 v{t+i}, s{48+2*b}, v{t+i}")
            self.bf(t, 4)
            for i in range(4): a(f"v_mul_f32 v{t+i}, s{49+2*b}, v{t+i}")
            self.bf(t, 4)
        G_ = 48
        a("L_F_pollh:")
        for wh in range(2):
            for b in range(2):
                for ks in range(4):
                    r = G_ + ((wh*2+b)*4+ks)*4
                    a(f"global_load_dwordx4 v[{r}:{r+3}], v{2+wh}, s[10:11] offset:{ks*1024+b*512} sc1")
        a("s_waitcnt vmcnt(0)")
        for g in range(16): self.tagchk(G_+4*g, first=(g == 0))
        self.poll_end("L_F_pollh")
        self.stamp(1)
        self.dstamp(5, 0, 8)
        for grp in range(4):
            r = G_ + grp*16
            for i in range(4):
                a(f"v_add_f32 v{r+i}, v{r+i}, v{r+4+i}")
                a(f"v_add_f32 v{r+8+i}, v{r+8+i}, v{r+12+i}")
            for i in range(4): a(f"v_add_f32 v{r+i}, v{r+i}, v{r+8+i}")
            self.bf(r, 4)
        for b in range(2):
            t = 24+4*b; d = 112+4*b; sa = G_+b*16; ca = G_+32+b*16
            for i in range(4): a(f"v_add_f32 v{ca+i}, 1.0, v{ca+i}")
            self.bf(ca, 4)
            for i in range(4): a(f"v_mul_f32 v{t+i}, v{t+i}, v{ca+i}")
            self.bf(t, 4)
            for i in range(4): a(f"v_add_f32 v{d+i}, v{t+i}, v{sa+i}")
        a("L_F_table:")
        for i in range(8): a(f"v_cvt_pk_bf16_f32 v{112+i}, v{112+i}, v{112+i}")
        a(f"""v_lshrrev_b32 v2, 2, v0
        v_lshlrev_b32 v2, 7, v2
        v_and_b32 v3, 3, v0
        v_lshlrev_b32 v3, 2, v3
        v_add_u32 v2, v2, v3
        v_add_u32 v2, {FTAB}, v2
        ds_write2_b32 v2, v112, v113 offset0:0 offset1:8
        ds_write2_b32 v2, v114, v115 offset0:16 offset1:24
        ds_write2_b32 v2, v116, v117 offset0:4 offset1:12
        ds_write2_b32 v2, v118, v119 offset0:20 offset1:28
        s_mov_b64 exec, -1
        L_F_gemv:
        s_cmp_eq_u32 s23, {L_SLOT0}
        s_cbranch_scc1 L_F_wown
        v_mov_b32 v2, {FLAGL}
        L_F_wflag:
        ds_read_b32 v3, v2
        s_waitcnt lgkmcnt(0)
        v_readfirstlane_b32 s33, v3
        s_cmp_eq_u32 s33, 1
        s_cbranch_scc1 L_F_wown
        s_add_u32 s95, s95, 1
        s_cmp_gt_u32 s95, 0x100000
        s_cbranch_scc1 L_F_wown
        s_sleep 2
        s_branch L_F_wflag
        L_F_wown:
        s_waitcnt vmcnt(0) lgkmcnt(0)""")
        self.stamp(2)
        def rd(tab, w):
            a(f"""ds_read_b128 v[{tab}:{tab+3}], v2
            ds_read_b128 v[{w}:{w+3}], v3
            ds_read_b128 v[{w+4}:{w+7}], v3 offset:1024
            ds_read_b128 v[{w+8}:{w+11}], v3 offset:2048
            ds_read_b128 v[{w+12}:{w+15}], v3 offset:3072
            v_add_u32 v2, 128, v2
            v_add_u32 v3, 4096, v3""")
        def cmp_(tab, w):
            for u in range(4):
                ar = 88+(u & 1)*4
                for r in range(4): a(f"v_and_b32 v{ar+r}, v{tab+u}, v{FM+r}")
                a(f"v_mfma_f32_16x16x32_bf16 v[96:99], v[{ar}:{ar+3}], v[{w+4*u}:{w+4*u+3}], v[96:99]")
        a(f"""v_lshrrev_b32 v2, 4, v0
        v_lshlrev_b32 v2, 5, v2
        v_bfe_u32 v3, v0, 3, 1
        v_lshlrev_b32 v3, 4, v3
        v_add_u32 v2, v2, v3
        v_add_u32 v2, {FTAB}, v2
        v_lshlrev_b32 v3, 4, v0
        v_add_u32 v3, s23, v3""")
        rd(48, 52)
        a("""v_mov_b32 v96, 0
        v_mov_b32 v97, 0
        v_mov_b32 v98, 0
        v_mov_b32 v99, 0
        s_movk_i32 s33, 5
        L_F_gloop:""")
        rd(68, 72)
        a("s_waitcnt lgkmcnt(5)")
        cmp_(48, 52)
        rd(48, 52)
        a("s_waitcnt lgkmcnt(5)")
        cmp_(68, 72)
        a(f"""s_sub_u32 s33, s33, 1
        s_cmp_lg_u32 s33, 0
        s_cbranch_scc1 L_F_gloop
        s_lshl_b32 s33, s21, 2
        s_add_u32 s33, s33, s22
        s_lshl_b32 s33, s33, 10
        s_cmp_eq_u32 s20, 2
        s_mov_b32 s34, {WS_MODP}
        s_cselect_b32 s34, {WS_QP}, s34
        s_add_u32 s33, s33, s34
        v_lshrrev_b32 v2, 5, v0
        v_lshlrev_b32 v2, 9, v2
        v_and_b32 v3, 15, v0
        v_lshlrev_b32 v3, 5, v3
        v_add_u32 v2, v2, v3
        v_bfe_u32 v3, v0, 4, 1
        v_lshlrev_b32 v3, 4, v3
        v_add3_u32 v2, v2, v3, s33""")
        self.tagput(96)
        a("global_store_dwordx4 v2, v[96:99], s[10:11] sc1")
        self.stamp(3)
        a(f"""s_waitcnt lgkmcnt(0)
        s_cmp_eq_u32 s39, 1
        s_cbranch_scc0 L_F_nobar2
        s_mov_b32 s39, 0
        s_barrier
        L_F_nobar2:
        s_add_u32 s38, s38, 1
        s_cmp_ge_u32 s38, 2
        s_cbranch_scc1 L_F_gath
        s_cmp_eq_u32 s25, 0
        s_cbranch_scc1 L_F_gath
        s_mov_b32 s20, s25
        s_mov_b32 s21, s26
        s_mov_b32 s22, s27
        s_mov_b32 s23, s28
        s_cmp_eq_u32 s20, 2
        s_cbranch_scc1 L_F_job
        s_mul_i32 s33, s22, 320
        v_lshlrev_b32 v2, 3, v0
        v_add_u32 v2, s33, v2
        s_mov_b32 exec_lo, -1
        s_mov_b32 exec_hi, 0xff
        global_load_dwordx2 v[18:19], v2, s[16:17]
        global_load_dwordx2 v[20:21], v2, s[16:17] offset:1280
        s_mov_b64 exec, -1
        s_waitcnt vmcnt(0)
        s_branch L_F_job
        L_F_gath:
        s_lshr_b32 s33, s6, 2
        s_lshr_b32 s34, s33, 2
        s_and_b32 s33, s33, 3
        s_mul_i32 s33, s33, 192
        v_lshlrev_b32 v2, 2, v0
        v_add_u32 v2, s33, v2
        v_lshrrev_b32 v3, 7, v2
        s_mul_i32 s33, s5, 6
        v_add_u32 v3, s33, v3
        v_lshlrev_b32 v3, 12, v3
        v_and_b32 v2, 127, v2
        v_lshlrev_b32 v2, 2, v2
        s_lshl_b32 s34, s34, 9
        s_add_u32 s34, s34, {WS_QP}
        v_add3_u32 v8, v2, v3, s34
        s_mov_b32 exec_lo, -1
        s_mov_b32 exec_hi, 0xffff""")
        self.gather([8], "L_F_q_poll", 16)
        a(f"""s_mov_b32 s52, 0x07060302
        v_perm_b32 v16, v17, v16, s52
        v_perm_b32 v17, v19, v18, s52
        v_lshlrev_b32 v2, 3, v0
        v_add_u32 v2, {QTAB}, v2
        ds_write_b64 v2, v[16:17]
        s_waitcnt lgkmcnt(0)""")
        self.stamp(4)
        self.dstamp(6, 0, 8)

    def build(self):
        a = self.a
        a.lines += [f"; @launch grid=(256,1,1) block=(640,1,1) lds={LDS_BYTES}", '.amdgcn_target "amdgcn-amd-amdhsa--gfx950"',
                    ".text", f".globl {KN}", ".p2align 8", f".type {KN},@function", f"{KN}:"]
        a("""s_cmp_ge_u32 s2, 256
        s_cbranch_scc1 L_exit
        s_load_dwordx2 s[10:11], s[0:1], 104
        v_lshrrev_b32 v1, 6, v0
        v_and_b32 v0, 63, v0
        v_readfirstlane_b32 s4, v1
        s_mov_b32 s95, 0
        s_and_b32 s5, s2, 7
        s_lshr_b32 s6, s2, 3
        s_cmp_eq_u32 s4, 8
        s_cbranch_scc1 L_F
        s_cmp_eq_u32 s4, 9
        s_cbranch_scc1 L_L""")
        self.A_wave(); self.WO(); self.FFN(); self.L_wave(); self.F_wave()
        a("""L_exit:
        s_endpgm""")
        out = a.finalize()
        out += ['.section .rodata,"a"', ".p2align 6", f".amdhsa_kernel {KN}",
                "  .amdhsa_next_free_vgpr 168", "  .amdhsa_next_free_sgpr 102", "  .amdhsa_accum_offset 168",
                "  .amdhsa_group_segment_fixed_size 0", "  .amdhsa_kernarg_size 112", "  .amdhsa_user_sgpr_count 2",
                "  .amdhsa_user_sgpr_kernarg_segment_ptr 1", "  .amdhsa_system_sgpr_workgroup_id_x 1",
                "  .amdhsa_float_denorm_mode_32 3", ".end_amdhsa_kernel"]
        return "\n".join(out) + "\n"

def gen(P): return G(P).build()

if __name__ == "__main__":
    p = argparse.ArgumentParser()
    p.add_argument("-o", default="k2.s"); p.add_argument("--stamps", type=int, default=0); p.add_argument("--nt", type=int, default=1)
    p.add_argument("--lims", default=""); p.add_argument("--limL", type=int, default=12); p.add_argument("--sleep", type=int, default=1); p.add_argument("--dbg", type=int, default=0)
    args = p.parse_args()
    P = dict(stamps=bool(args.stamps), nt=bool(args.nt), limL=args.limL, sleep=args.sleep, dbg=bool(args.dbg))
    if args.lims: P["lims"] = [int(c) for c in args.lims.split(",")]
    open(args.o, "w").write(gen(P))
```

```python
import sys, argparse
from asmlib import Asm

KN = "adaLN_cond__sliding_block_cached__geglu_ffn__decode_kernel"
WS_MODP=0x1000; WS_QP=0x20000; WS_OP=0x50000; WS_YP=0x90000; WS_DP=0xA0000; WS_STAMP=0x100000
L_SLOT0=0; L_SLOT1=40960; L_WO=40960; L_GU=0; L_DOWN=81920; L_X1=133120
SCR=139264
QTAB=SCR; WMAX=SCR+512; WSUM=SCR+544; FLAGL=SCR+576; STAT=SCR+640
FTAB=SCR+1536; T1=SCR+3072; T2=SCR+9216; RED=SCR+9728
LDS_BYTES=163840
PVW=1568; R16=528
LOG2E=0x3fb8aa3b
DPPM="row_mask:0xf bank_mask:0xf"

class G:
    def __init__(self, P):
        self.P = P; self.a = Asm()
        self.NT = " nt" if P.get("nt", True) else ""
        self.stamps = P.get("stamps", False)
    def stamp(self, idx):
        if not self.stamps: return
        self.a(f"""s_memrealtime s[96:97]
        s_lshl_b32 s98, s2, 4
        s_add_u32 s98, s98, s4
        s_lshl_b32 s98, s98, 6
        s_add_u32 s98, s98, {WS_STAMP + idx*4}
        s_waitcnt lgkmcnt(0)
        v_mov_b32 v166, s98
        v_mov_b32 v167, s96
        s_mov_b64 s[100:101], exec
        s_mov_b64 exec, 1
        global_store_dword v166, v167, s[10:11]
        s_mov_b64 exec, s[100:101]""")
    def dstamp(self, idx, cond_wg=None, cond_wave=None):
        if not self.P.get("dbg", False): return
        lab = self.a.newlabel("L_ds")
        self.a(f"""s_cmp_eq_u32 s2, {cond_wg}
        s_cbranch_scc0 {lab}
        s_cmp_eq_u32 s4, {cond_wave}
        s_cbranch_scc0 {lab}
        s_memrealtime s[96:97]
        s_load_dwordx2 s[98:99], s[0:1], 96
        s_waitcnt lgkmcnt(0)
        v_mov_b32 v166, {idx*4}
        v_mov_b32 v167, s96
        s_mov_b64 s[100:101], exec
        s_mov_b64 exec, 1
        global_store_dword v166, v167, s[98:99]
        s_mov_b64 exec, s[100:101]
        {lab}:""")
    def tags(self):
        self.a("""s_add_u32 s7, s7, 1
        s_and_b32 s8, s7, 0x7f
        s_add_u32 s8, s8, 1
        s_add_u32 s9, s8, 127""")
    def tagput(self, r):
        for i in range(4): self.a(f"v_and_or_b32 v{r+i}, v{r+i}, v5, s{8+(i&1)}")
    def tagchk(self, r, first=False):
        for i in range(4):
            src = "0" if (first and i == 0) else "v7"
            self.a(f"v_msad_u8 v7, v{r+i}, s{8+(i&1)}, {src}")
    def poll_end(self, lab):
        self.a(f"""v_cmp_ne_u32 vcc, 0, v7
        s_cbranch_vccz {lab}_ok
        s_add_u32 s95, s95, 1
        s_cmp_gt_u32 s95, 0x10000
        s_cbranch_scc1 {lab}_ok
        s_sleep {self.P.get("sleep",1)}
        s_branch {lab}
        {lab}_ok:""")
    def bf(self, r, n=1):
        for i in range(n): self.a(f"v_cvt_pk_bf16_f32 v{r+i}, v{r+i}, v{r+i}")
        for i in range(n): self.a(f"v_and_b32 v{r+i}, 0xffff0000, v{r+i}")
    def masks(self, m0):
        a = self.a
        a("""v_and_b32 v2, 1, v0
        v_mov_b32 v3, 0xffff
        v_mov_b32 v4, 0xffff0000
        v_cmp_eq_u32 vcc, 1, v2
        v_cndmask_b32 v3, v3, v4, vcc
        v_bfe_u32 v2, v0, 1, 2""")
        for r in range(4):
            a(f"v_cmp_eq_u32 vcc, {r}, v2")
            a(f"v_cndmask_b32 v{m0+r}, 0, v3, vcc")
    def gather(self, addrs, lab, base, rnd=True):
        a = self.a
        a(f"{lab}:")
        for g, va in enumerate(addrs):
            for k in range(4):
                r = base + g*16 + k*4
                a(f"global_load_dwordx4 v[{r}:{r+3}], v{va}, s[10:11] offset:{k*1024} sc1")
        a("s_waitcnt vmcnt(0)")
        for g in range(len(addrs)*4): self.tagchk(base+4*g, first=(g == 0))
        self.poll_end(lab)
        for g in range(len(addrs)):
            r = base + g*16
            for i in range(4):
                a(f"v_add_f32 v{r+i}, v{r+i}, v{r+4+i}")
                a(f"v_add_f32 v{r+8+i}, v{r+8+i}, v{r+12+i}")
            for i in range(4): a(f"v_add_f32 v{r+i}, v{r+i}, v{r+8+i}")
            if rnd: self.bf(r, 4)
    def dpp_sum(self, regs, mods, op="v_add_f32"):
        for mod in mods:
            for r in regs: self.a(f"{op}_dpp v{r}, v{r}, v{r} {mod} {DPPM}")

    def A_wave(self):
        a = self.a; P = self.P; NT = self.NT
        KR=16; VR=64; QR=112; MK=124; SC=128; ACC=132; AOP=144
        self.MK = MK
        if P.get("calib"):
            a("s_memrealtime s[92:93]")
        a(f"""s_load_dwordx4 s[12:15], s[0:1], 8
        s_lshr_b32 s20, s6, 2
        s_lshr_b32 s21, s20, 2
        s_and_b32 s20, s20, 3
        s_lshl_b32 s22, s5, 2
        s_add_u32 s20, s20, s22
        s_lshl_b32 s21, s21, 5
        s_add_u32 s20, s20, s21
        s_lshl_b32 s20, s20, 12
        s_and_b32 s21, s6, 3
        s_lshl_b32 s21, s21, 8
        s_add_u32 s20, s20, s21
        s_lshl_b32 s21, s4, 5
        s_add_u32 s20, s20, s21
        s_add_u32 s20, s20, 3072
        s_mul_i32 s27, s20, 384
        v_lshrrev_b32 v1, 3, v0
        v_mul_u32_u24 v1, 384, v1
        v_and_b32 v2, 7, v0
        v_lshlrev_b32 v2, 4, v2
        v_add_u32 v1, v1, v2
        s_movk_i32 s24, 3072
        s_movk_i32 s25, 6144
        s_movk_i32 s26, 9216
        s_waitcnt lgkmcnt(0)
        s_load_dword s7, s[10:11], 0
        s_add_u32 s16, s12, s27
        s_addc_u32 s17, s13, 0
        s_movk_i32 s18, 12288
        s_mov_b32 s19, 0x20000
        s_add_u32 s20, s14, s27
        s_addc_u32 s21, s15, 0
        s_movk_i32 s22, 12288
        s_mov_b32 s23, 0x20000""")
        self.stamp(0)
        a("s_barrier")
        self.dstamp(0, 0, 0); self.dstamp(8, 80, 0)
        lims = P.get("lims", [3]*18 + [0]*6)
        so = ["0", "s24", "s25", "s26"]
        for i in range(24):
            isK = i < 12; ii = i % 12; t4, th = divmod(ii, 3)
            reg = (KR if isK else VR) + ii*4
            srd = "s[16:19]" if isK else "s[20:23]"
            lim = lims[i]
            if lim and i >= lim: a(f"s_waitcnt vmcnt({lim-1})")
            a(f"buffer_load_dwordx4 v[{reg}:{reg+3}], v1, {srd}, {so[t4]} offen offset:{th*128}{NT}")
        self.masks(MK)
        a("v_mov_b32 v5, 0xffffff00")
        a("s_waitcnt lgkmcnt(0)")
        self.tags()
        self.stamp(1)
        a("s_barrier")
        self.stamp(2)
        self.dstamp(1, 0, 0); self.dstamp(9, 80, 0)
        a(f"""v_and_b32 v2, 7, v0
        v_lshlrev_b32 v2, 4, v2
        v_add_u32 v2, {QTAB}, v2
        ds_read_b128 v[{QR}:{QR+3}], v2
        ds_read_b128 v[{QR+4}:{QR+7}], v2 offset:128
        ds_read_b128 v[{QR+8}:{QR+11}], v2 offset:256
        s_waitcnt vmcnt(12)
        s_waitcnt lgkmcnt(0)""")
        for t4 in range(4): a(f"v_dot2_f32_bf16 v{SC+t4}, v{KR+t4*12}, v{QR}, 0")
        for i in range(1, 12):
            for t4 in range(4): a(f"v_dot2c_f32_bf16 v{SC+t4}, v{KR+t4*12+i}, v{QR+i}")
        S4 = [SC+t for t in range(4)]
        self.dpp_sum(S4, ("quad_perm:[1,0,3,2]", "quad_perm:[2,3,0,1]", "row_half_mirror"))
        a("s_mov_b32 s28, 0x3d93cd3a")
        self.bf(SC, 4)
        for t4 in range(4): a(f"v_mul_f32 v{SC+t4}, s28, v{SC+t4}")
        self.bf(SC, 4)
        a(f"""v_max_f32 v2, v{SC}, v{SC+1}
        v_max3_f32 v2, v2, v{SC+2}, v{SC+3}
        v_max_f32_dpp v2, v2, v2 row_ror:8 {DPPM}
        v_mov_b32 v3, v2
        v_permlane16_swap_b32 v2, v3
        v_max_f32 v2, v2, v3
        v_mov_b32 v3, v2
        v_permlane32_swap_b32 v2, v3
        v_max_f32 v2, v2, v3
        s_lshl_b32 s29, s4, 2
        s_add_u32 s29, s29, {WMAX}
        v_mov_b32 v3, s29
        ds_write_b32 v3, v2
        s_waitcnt lgkmcnt(0)
        s_barrier
        v_mov_b32 v4, {WMAX}
        ds_read_b128 v[8:11], v4
        ds_read_b128 v[12:15], v4 offset:16
        s_waitcnt lgkmcnt(0)
        v_max3_f32 v8, v8, v9, v10
        v_max3_f32 v12, v12, v13, v14
        v_max3_f32 v8, v8, v11, v15
        v_max_f32 v6, v8, v12
        s_mov_b32 s28, {LOG2E}""")
        for t4 in range(4): a(f"v_sub_f32 v{SC+t4}, v{SC+t4}, v6")
        for t4 in range(4): a(f"v_mul_f32 v{SC+t4}, s28, v{SC+t4}")
        for t4 in range(4): a(f"v_exp_f32 v{SC+t4}, v{SC+t4}")
        a(f"""v_add_f32 v2, v{SC}, v{SC+1}
        v_add_f32 v3, v{SC+2}, v{SC+3}
        v_add_f32 v2, v2, v3
        v_add_f32_dpp v2, v2, v2 row_ror:8 {DPPM}
        v_mov_b32 v3, v2
        v_permlane16_swap_b32 v2, v3
        v_add_f32 v2, v2, v3
        v_mov_b32 v3, v2
        v_permlane32_swap_b32 v2, v3
        v_add_f32 v2, v2, v3
        v_mov_b32 v3, s29
        ds_write_b32 v3, v2 offset:32""")
        for t4 in range(4): a(f"v_cvt_pk_bf16_f32 v{SC+t4}, v{SC+t4}, v{SC+t4}")
        a(f"""v_and_b32 v2, 7, v0
        v_lshlrev_b32 v2, 5, v2
        v_bfe_u32 v3, v0, 4, 1
        v_lshlrev_b32 v3, 4, v3
        v_add_u32 v2, v2, v3
        v_lshrrev_b32 v3, 5, v0
        v_mul_u32_u24 v3, 768, v3
        v_add_u32 v2, v2, v3
        s_mul_i32 s29, s4, {PVW}
        s_add_u32 s29, s29, {RED}
        v_add_u32 v2, s29, v2
        s_lshl_b32 s29, s4, 3
        v_lshrrev_b32 v8, 3, v0
        v_add_u32 v8, s29, v8
        v_and_b32 v3, 7, v0
        v_mul_u32_u24 v3, {PVW}, v3
        v_lshlrev_b32 v4, 4, v8
        v_add_u32 v3, v3, v4
        v_add_u32 v3, {RED}, v3
        s_lshl_b32 s29, s5, 5
        s_add_u32 s29, s29, s6
        s_lshl_b32 s29, s29, 10
        s_add_u32 s29, s29, {WS_OP}
        v_add_u32 v4, s29, v4""")
        for t4 in range(4):
            ar = AOP + (t4 & 1)*4
            for r in range(4): a(f"v_and_b32 v{ar+r}, v{SC+t4}, v{MK+r}")
            for th in range(3):
                i = t4*3 + th
                a(f"s_waitcnt vmcnt({11-i})")
                c = "0" if t4 == 0 else f"v[{ACC+th*4}:{ACC+th*4+3}]"
                a(f"v_mfma_f32_16x16x32_bf16 v[{ACC+th*4}:{ACC+th*4+3}], v[{ar}:{ar+3}], v[{VR+i*4}:{VR+i*4+3}], {c}")
        self.stamp(3)
        a(f"""s_mov_b32 exec_lo, 0x00ff00ff
        s_mov_b32 exec_hi, 0xff00ff00
        ds_write_b128 v2, v[{ACC}:{ACC+3}]
        ds_write_b128 v2, v[{ACC+4}:{ACC+7}] offset:256
        ds_write_b128 v2, v[{ACC+8}:{ACC+11}] offset:512
        s_mov_b64 exec, -1
        s_waitcnt lgkmcnt(0)
        s_barrier
        s_cmp_ge_u32 s4, 6
        s_cbranch_scc1 L_A_ml
        ds_read_b128 v[8:11], v3
        ds_read_b128 v[12:15], v3 offset:768
        s_waitcnt lgkmcnt(0)""")
        for i in range(4): a(f"v_add_f32 v{8+i}, v{8+i}, v{12+i}")
        self.dpp_sum([8,9,10,11], ("quad_perm:[1,0,3,2]", "quad_perm:[2,3,0,1]", "row_half_mirror"))
        self.tagput(8)
        a(f"""s_mov_b32 exec_lo, 0x01010101
        s_mov_b32 exec_hi, 0x01010101
        global_store_dwordx4 v4, v[8:11], s[10:11] sc1
        s_mov_b64 exec, -1
        s_branch L_A_tail
        L_A_ml:
        s_cmp_eq_u32 s4, 6
        s_cbranch_scc0 L_A_tail
        v_mov_b32 v4, {WSUM}
        ds_read_b128 v[8:11], v4
        ds_read_b128 v[12:15], v4 offset:16
        s_add_u32 s29, s29, 768
        v_mov_b32 v4, s29
        s_waitcnt lgkmcnt(0)
        v_add_f32 v8, v8, v9
        v_add_f32 v10, v10, v11
        v_add_f32 v12, v12, v13
        v_add_f32 v14, v14, v15
        v_add_f32 v8, v8, v10
        v_add_f32 v12, v12, v14
        v_add_f32 v9, v8, v12
        v_mov_b32 v8, v6
        v_mov_b32 v10, v6
        v_mov_b32 v11, v9""")
        self.tagput(8)
        a(f"""s_mov_b64 exec, 1
        global_store_dwordx4 v4, v[8:11], s[10:11] sc1
        s_mov_b64 exec, -1
        L_A_tail:""")
        self.stamp(4)
        self.dstamp(2, 0, 0); self.dstamp(10, 80, 0)
        a("""s_cmp_lt_u32 s6, 10
        s_cbranch_scc1 L_WO
        s_cmp_lt_u32 s6, 16
        s_cbranch_scc1 L_FFN
        s_endpgm""")

    def gemv1x2(self, nt, W0, TB, acc0, aop):
        a = self.a; MK = self.MK
        a(f"""v_lshrrev_b32 v2, 3, v0
        v_lshlrev_b32 v2, 3, v2
        s_mul_i32 s29, s4, {nt//2*128}
        s_add_u32 s29, s29, {T1}
        v_add_u32 v2, s29, v2""")
        self._g_pre = None
    def gemv1x2_run(self, nt, W0, TB, acc0, aop):
        a = self.a; MK = self.MK
        for q in range(nt//2):
            for b in range(2):
                r = TB + (q*2+b)*2
                a(f"ds_read_b64 v[{r}:{r+1}], v2 offset:{q*128+b*64}")
        a(f"""v_and_b32 v3, 7, v0
        v_lshlrev_b32 v3, 5, v3
        v_bfe_u32 v4, v0, 4, 1
        v_lshlrev_b32 v4, 4, v4
        v_add_u32 v3, v3, v4
        v_lshrrev_b32 v4, 5, v0
        v_mul_u32_u24 v4, {R16}, v4
        v_add_u32 v3, v3, v4
        s_mul_i32 s29, s4, {2*R16}
        s_add_u32 s29, s29, {RED}
        v_add_u32 v3, s29, v3""")
        first = [True, True]
        seq = [(n, b) for n in range(nt) for b in range(2)]
        for idx, (n, b) in enumerate(seq):
            q, u = divmod(n, 2)
            if u == 0 and b == 0: a(f"s_waitcnt lgkmcnt({(nt//2 - 1 - q)*2})")
            ar = aop + (idx & 1)*4
            tv = TB + (q*2+b)*2 + u
            for r in range(4): a(f"v_and_b32 v{ar+r}, v{tv}, v{MK+r}")
            d = acc0 + 4*b
            c = "0" if first[b] else f"v[{d}:{d+3}]"
            first[b] = False
            a(f"v_mfma_f32_16x16x32_bf16 v[{d}:{d+3}], v[{ar}:{ar+3}], v[{W0+4*n}:{W0+4*n+3}], {c}")
        a(f"""s_mov_b32 exec_lo, 0x00ff00ff
        s_mov_b32 exec_hi, 0xff00ff00
        ds_write_b128 v3, v[{acc0}:{acc0+3}]
        ds_write_b128 v3, v[{acc0+4}:{acc0+7}] offset:256
        s_mov_b64 exec, -1
        s_waitcnt lgkmcnt(0)
        s_barrier""")

    def WO(self):
        a = self.a
        W0=16; OG=64; ML=80; GA=96; TB=64; GACC=112; GAOP=144
        a.label("L_WO")
        a(f"""v_lshlrev_b32 v2, 4, v0
        s_mul_i32 s29, s4, {12*1024}
        s_add_u32 s29, s29, {L_WO}
        v_add_u32 v2, s29, v2""")
        for n in range(12): a(f"ds_read_b128 v[{W0+4*n}:{W0+4*n+3}], v2 offset:{n*1024}")
        a(f"""s_lshl_b32 s29, s4, 2
        v_lshrrev_b32 v12, 4, v0
        v_add_u32 v12, s29, v12
        v_lshrrev_b32 v3, 4, v12
        v_lshlrev_b32 v3, 9, v3
        v_and_b32 v2, 15, v12
        v_lshlrev_b32 v2, 4, v2
        v_add_u32 v13, v2, v3
        s_lshr_b32 s29, s6, 1
        s_add_u32 s29, s29, 10
        s_lshl_b32 s29, s29, 12
        s_and_b32 s30, s6, 1
        s_lshl_b32 s30, s30, 8
        s_add_u32 s29, s29, s30
        s_add_u32 s29, s29, {WS_MODP}
        v_add_u32 v2, s29, v13""")
        self.gather([2], "L_WO_ga", GA)
        a(f"""s_lshr_b32 s29, s6, 1
        s_lshl_b32 s29, s29, 6
        s_and_b32 s30, s6, 1
        s_lshl_b32 s30, s30, 4
        s_add_u32 s29, s29, s30
        s_lshl_b32 s29, s29, 4
        s_mul_i32 s30, s5, 5120
        s_add_u32 s29, s29, s30
        s_add_u32 s29, s29, {WS_YP}
        v_add_u32 v13, s29, v13
        v_and_b32 v14, 15, v0
        v_mul_u32_u24 v14, {R16}, v14
        v_lshlrev_b32 v12, 4, v12
        v_add_u32 v14, v14, v12
        v_add_u32 v14, {RED}, v14
        s_and_b32 s29, s4, 3
        s_mul_i32 s29, s29, {12*128}
        s_lshr_b32 s30, s4, 2
        s_lshl_b32 s30, s30, 6
        s_add_u32 s29, s29, s30
        s_add_u32 s29, s29, {T1}
        v_lshrrev_b32 v15, 2, v0
        v_lshlrev_b32 v15, 7, v15
        v_and_b32 v3, 1, v0
        v_lshlrev_b32 v3, 5, v3
        v_add_u32 v15, v15, v3
        v_bfe_u32 v3, v0, 1, 1
        v_lshlrev_b32 v3, 2, v3
        v_add3_u32 v15, v15, v3, s29
        s_lshl_b32 s29, s5, 5
        s_lshl_b32 s30, s4, 2
        s_add_u32 s29, s29, s30
        s_lshl_b32 s29, s29, 10
        s_add_u32 s29, s29, {WS_OP}
        v_lshlrev_b32 v3, 4, v0
        v_add_u32 v3, s29, v3
        v_mov_b32 v4, s29
        s_mov_b32 s28, {LOG2E}
        s_mov_b32 exec_lo, -1
        s_mov_b32 exec_hi, 0x0000ffff
        L_WO_poll:""")
        for s in range(4): a(f"global_load_dwordx4 v[{OG+4*s}:{OG+4*s+3}], v3, s[10:11] offset:{s*1024} sc1")
        for s in range(4): a(f"global_load_dwordx4 v[{ML+4*s}:{ML+4*s+3}], v4, s[10:11] offset:{s*1024+768} sc1")
        a("s_waitcnt vmcnt(0)")
        for s in range(4): self.tagchk(OG+4*s, first=(s == 0))
        for s in range(4): self.tagchk(ML+4*s)
        self.poll_end("L_WO_poll")
        self.stamp(5)
        self.dstamp(3, 0, 0)
        for s in range(4): a(f"v_and_b32 v{ML+4*s}, v5, v{ML+4*s}")
        a(f"""v_max_f32 v6, v{ML}, v{ML+4}
        v_max3_f32 v6, v6, v{ML+8}, v{ML+12}""")
        for s in range(4): a(f"v_sub_f32 v{ML+4*s}, v{ML+4*s}, v6")
        for s in range(4): a(f"v_mul_f32 v{ML+4*s}, s28, v{ML+4*s}")
        for s in range(4): a(f"v_exp_f32 v{ML+4*s}, v{ML+4*s}")
        a(f"""v_mul_f32 v7, v{ML}, v{ML+1}
        v_fmac_f32 v7, v{ML+4}, v{ML+5}
        v_fmac_f32 v7, v{ML+8}, v{ML+9}
        v_fmac_f32 v7, v{ML+12}, v{ML+13}
        v_rcp_f32 v7, v7""")
        for i in range(4): a(f"v_mul_f32 v{8+i}, v{ML}, v{OG+i}")
        for s in range(1, 4):
            for i in range(4): a(f"v_fmac_f32 v{8+i}, v{ML+4*s}, v{OG+4*s+i}")
        for i in range(4): a(f"v_mul_f32 v{8+i}, v{8+i}, v7")
        for i in range(4): a(f"v_cvt_pk_bf16_f32 v{8+i}, v{8+i}, v{8+i}")
        a(f"""ds_write2_b32 v15, v8, v9 offset0:0 offset1:2
        ds_write2_b32 v15, v10, v11 offset0:4 offset1:6
        s_mov_b64 exec, -1""")
        self.gemv1x2(12, W0, TB, GACC, GAOP)
        a("""s_waitcnt lgkmcnt(0)
        s_barrier""")
        self.stamp(9)
        self.gemv1x2_run(12, W0, TB, GACC, GAOP)
        self.stamp(10)
        a("ds_read_b128 v[8:11], v14")
        a("s_waitcnt lgkmcnt(0)")
        self.dpp_sum([8,9,10,11], ("row_ror:8", "row_ror:4", "row_ror:2", "row_ror:1"))
        for i in range(4): a(f"v_mul_f32 v{8+i}, v{8+i}, v{GA+i}")
        self.tagput(8)
        a(f"""s_mov_b32 exec_lo, 0x00010001
        s_mov_b32 exec_hi, 0x00010001
        global_store_dwordx4 v13, v[8:11], s[10:11] sc1""")
        self.stamp(6)
        self.dstamp(4, 0, 0)
        a("s_endpgm")

    def FFN(self):
        a = self.a; MK = self.MK
        W0=16; DW=64; YG=128; SB=96; CB=100; GB=152
        a.label("L_FFN")
        a(f"""s_load_dwordx2 s[12:13], s[0:1], 0
        s_load_dwordx2 s[14:15], s[0:1], 88
        v_lshlrev_b32 v2, 4, v0
        s_mul_i32 s29, s4, {10*1024}
        s_add_u32 s29, s29, {L_GU}
        v_add_u32 v3, s29, v2""")
        for n in range(10): a(f"ds_read_b128 v[{W0+4*n}:{W0+4*n+3}], v3 offset:{n*1024}")
        a(f"""s_mul_i32 s31, s5, 6
        s_add_u32 s31, s31, s6
        s_sub_u32 s31, s31, 10
        s_cmp_ge_u32 s4, 5
        s_cbranch_scc1 L_FFN_w5
        s_lshl_b32 s29, s4, 13
        s_add_u32 s29, s29, {L_DOWN}
        v_add_u32 v3, s29, v2
        s_waitcnt lgkmcnt(0)""")
        for n in range(8): a(f"ds_read_b128 v[{DW+4*n}:{DW+4*n+3}], v3 offset:{n*1024}")
        a(f"""v_lshrrev_b32 v3, 5, v0
        v_mul_u32_u24 v3, 1280, v3
        v_and_b32 v4, 31, v0
        v_lshlrev_b32 v4, 3, v4
        v_add_u32 v3, v3, v4
        s_lshl_b32 s29, s4, 8
        v_add_u32 v3, s29, v3
        global_load_dwordx2 v[56:57], v3, s[12:13]
        s_add_u32 s29, s4, 15
        s_lshl_b32 s29, s29, 12
        s_add_u32 s29, s29, {WS_MODP}
        v_add_u32 v3, s29, v2
        v_add_u32 v4, {5*4096}, v3""")
        self.gather([3, 4], "L_FFN_sc", 128)
        for i in range(4): a(f"v_mov_b32 v{SB+i}, v{128+i}")
        for i in range(4): a(f"v_add_f32 v{CB+i}, 1.0, v{144+i}")
        self.bf(CB, 4)
        a(f"""v_lshlrev_b32 v58, 16, v56
        v_and_b32 v59, 0xffff0000, v56
        v_lshlrev_b32 v60, 16, v57
        v_and_b32 v61, 0xffff0000, v57
        s_lshl_b32 s29, s4, 10
        v_add_u32 v12, s29, v2
        v_add_u32 v12, {L_X1}, v12
        s_add_u32 s29, s29, {T1}
        v_bfe_u32 v13, v0, 2, 3
        v_lshlrev_b32 v13, 7, v13
        v_lshrrev_b32 v4, 5, v0
        v_lshlrev_b32 v4, 6, v4
        v_add_u32 v13, v13, v4
        v_and_b32 v4, 1, v0
        v_lshlrev_b32 v4, 5, v4
        v_add_u32 v13, v13, v4
        v_bfe_u32 v4, v0, 1, 1
        v_lshlrev_b32 v4, 2, v4
        v_add3_u32 v13, v13, v4, s29
        v_lshrrev_b32 v15, 5, v0
        v_mul_u32_u24 v15, 40, v15
        v_add_u32 v15, {STAT}, v15
        s_lshl_b32 s29, s4, 3
        v_add_u32 v14, s29, v15
        s_lshl_b32 s29, s4, 10
        s_add_u32 s29, s29, {WS_YP}
        v_add_u32 v3, s29, v2
        s_mov_b32 s30, 5120
        L_FFN_poll:
        v_mov_b32 v4, v3""")
        for ks in range(8):
            a(f"global_load_dwordx4 v[{YG+4*ks}:{YG+4*ks+3}], v4, s[10:11] sc1")
            if ks < 7: a("v_add_u32 v4, s30, v4")
        a("s_waitcnt vmcnt(0)")
        for ks in range(8): self.tagchk(YG+4*ks, first=(ks == 0))
        self.poll_end("L_FFN_poll")
        self.stamp(5)
        self.dstamp(11, 80, 0)
        for i in range(4):
            a(f"v_add_f32 v{YG+i}, v{YG+i}, v{YG+4+i}")
            a(f"v_add_f32 v{YG+8+i}, v{YG+8+i}, v{YG+12+i}")
            a(f"v_add_f32 v{YG+16+i}, v{YG+16+i}, v{YG+20+i}")
            a(f"v_add_f32 v{YG+24+i}, v{YG+24+i}, v{YG+28+i}")
        for i in range(4):
            a(f"v_add_f32 v{YG+i}, v{YG+i}, v{YG+8+i}")
            a(f"v_add_f32 v{YG+16+i}, v{YG+16+i}, v{YG+24+i}")
        for i in range(4): a(f"v_add3_u32 v0, v0, 0, 0") if False else None
        for i in range(4): a(f"v_add_f32 v{YG+i}, v{YG+i}, v{YG+16+i}")
        for i in range(4): a(f"v_add_f32 v{8+i}, v{58+i}, v{YG+i}")
        self.bf(8, 4)
        a(f"""ds_write_b128 v12, v[8:11]
        v_add_f32 v{YG}, v8, v9
        v_add_f32 v{YG+2}, v10, v11
        v_mul_f32 v{YG+1}, v8, v8
        v_add_f32 v{YG}, v{YG}, v{YG+2}
        v_fmac_f32 v{YG+1}, v9, v9
        v_fmac_f32 v{YG+1}, v10, v10
        v_fmac_f32 v{YG+1}, v11, v11""")
        self.dpp_sum([YG, YG+1], ("row_ror:8", "row_ror:4", "row_ror:2", "row_ror:1"))
        a(f"""v_mov_b32 v{YG+2}, v{YG}
        v_mov_b32 v{YG+3}, v{YG+1}
        v_permlane16_swap_b32 v{YG}, v{YG+2}
        v_permlane16_swap_b32 v{YG+1}, v{YG+3}
        v_add_f32 v{YG}, v{YG}, v{YG+2}
        v_add_f32 v{YG+1}, v{YG+1}, v{YG+3}
        s_mov_b32 exec_lo, 1
        s_mov_b32 exec_hi, 1
        ds_write_b64 v14, v[{YG}:{YG+1}]
        s_mov_b64 exec, -1
        s_branch L_FFN_b1
        L_FFN_w5:
        s_cmp_eq_u32 s4, 5
        s_cbranch_scc0 L_FFN_b1
        s_cmp_ge_u32 s31, 40
        s_cbranch_scc1 L_FFN_b1
        s_lshl_b32 s33, s31, 3
        v_and_b32 v2, 7, v0
        v_add_u32 v3, s33, v2
        v_lshrrev_b32 v4, 6, v3
        v_lshlrev_b32 v4, 12, v4
        v_and_b32 v3, 63, v3
        v_lshlrev_b32 v3, 4, v3
        v_add_u32 v3, v3, v4
        v_add_u32 v3, {WS_MODP + 25*4096}, v3""")
        self.gather([3], "L_FFN_gb", GB)
        a(f"""L_FFN_b1:
        s_waitcnt lgkmcnt(0)
        s_barrier
        s_cmp_ge_u32 s4, 5
        s_cbranch_scc1 L_FFN_b2
        ds_read2_b64 v[{YG+8}:{YG+11}], v15 offset0:0 offset1:1
        ds_read2_b64 v[{YG+12}:{YG+15}], v15 offset0:2 offset1:3
        ds_read_b64 v[{YG+16}:{YG+17}], v15 offset:32
        s_mov_b32 s28, 0x3acccccd
        s_waitcnt lgkmcnt(0)
        v_add_f32 v{YG}, v{YG+8}, v{YG+10}
        v_add_f32 v{YG+1}, v{YG+9}, v{YG+11}
        v_add_f32 v{YG+2}, v{YG+12}, v{YG+14}
        v_add_f32 v{YG+3}, v{YG+13}, v{YG+15}
        v_add_f32 v{YG}, v{YG}, v{YG+16}
        v_add_f32 v{YG+1}, v{YG+1}, v{YG+17}
        v_add_f32 v{YG}, v{YG}, v{YG+2}
        v_add_f32 v{YG+1}, v{YG+1}, v{YG+3}
        v_mul_f32 v{YG}, s28, v{YG}
        v_mul_f32 v{YG+1}, s28, v{YG+1}
        v_fma_f32 v{YG+1}, -v{YG}, v{YG}, v{YG+1}
        v_max_f32 v{YG+1}, 0, v{YG+1}""")
        self.bf(YG, 2)
        a(f"v_add_f32 v{YG+1}, 0x3727c5ac, v{YG+1}")
        for i in range(4): a(f"v_sub_f32 v{8+i}, v{8+i}, v{YG}")
        self.bf(YG+1)
        a(f"v_sqrt_f32 v{YG+1}, v{YG+1}")
        self.bf(8, 4)
        self.bf(YG+1)
        a(f"v_rcp_f32 v{YG+1}, v{YG+1}")
        for i in range(4): a(f"v_mul_f32 v{8+i}, v{8+i}, v{YG+1}")
        self.bf(8, 4)
        for i in range(4): a(f"v_mul_f32 v{8+i}, v{8+i}, v{CB+i}")
        self.bf(8, 4)
        for i in range(4): a(f"v_add_f32 v{8+i}, v{8+i}, v{SB+i}")
        for i in range(4): a(f"v_cvt_pk_bf16_f32 v{8+i}, v{8+i}, v{8+i}")
        a(f"""ds_write2_b32 v13, v8, v9 offset0:0 offset1:2
        ds_write2_b32 v13, v10, v11 offset0:4 offset1:6
        L_FFN_b2:""")
        self.gemv1x2(10, W0, 96, 128, 144)
        a(f"""s_lshr_b32 s29, s4, 2
        s_lshl_b32 s29, s29, 4
        s_and_b32 s30, s4, 3
        s_lshl_b32 s30, s30, 1
        s_add_u32 s29, s29, s30
        v_bfe_u32 v14, v0, 4, 1
        v_lshlrev_b32 v14, 3, v14
        v_lshrrev_b32 v3, 5, v0
        v_add3_u32 v14, v14, v3, s29
        v_lshlrev_b32 v14, 4, v14
        v_and_b32 v4, 15, v0
        v_mul_u32_u24 v4, {R16}, v4
        v_add_u32 v14, v14, v4
        v_add_u32 v14, {RED}, v14
        v_add_u32 v3, s30, v3
        v_lshrrev_b32 v4, 2, v3
        v_lshlrev_b32 v4, 7, v4
        v_and_b32 v3, 3, v3
        v_lshlrev_b32 v3, 2, v3
        v_add_u32 v15, v3, v4
        v_and_b32 v12, 3, v0
        v_lshlrev_b32 v3, 5, v12
        v_add_u32 v15, v15, v3
        s_lshr_b32 s29, s4, 2
        s_lshl_b32 s29, s29, 4
        s_add_u32 s29, s29, {T2}
        v_add_u32 v15, s29, v15
        s_waitcnt lgkmcnt(0)
        s_barrier""")
        self.stamp(9)
        self.gemv1x2_run(10, W0, 96, 128, 144)
        self.stamp(10)
        a("""ds_read_b128 v[8:11], v14
        v_cmp_eq_u32 s[34:35], 1, v12
        v_cmp_eq_u32 s[36:37], 2, v12
        v_cmp_eq_u32 s[38:39], 3, v12
        s_mov_b32 s28, 0x3d372713
        s_waitcnt lgkmcnt(0)""")
        self.dpp_sum([8,9,10,11], ("row_ror:8", "row_ror:4", "row_ror:2", "row_ror:1"))
        a("""v_cndmask_b32 v8, v8, v9, s[34:35]
        v_cndmask_b32 v8, v8, v10, s[36:37]
        v_cndmask_b32 v8, v8, v11, s[38:39]
        v_mov_b32 v12, v8
        v_permlane16_swap_b32 v8, v12""")
        self.bf(8); self.bf(12)
        a("""v_mul_f32 v9, v8, v8
        v_mul_f32 v9, v9, v8
        v_fma_f32 v9, v9, s28, v8
        v_mul_f32 v9, 0xc0135761, v9
        v_exp_f32 v9, v9
        v_add_f32 v9, 1.0, v9
        v_rcp_f32 v9, v9
        v_mul_f32 v8, v8, v9""")
        self.bf(8)
        a(f"""v_mul_f32 v8, v8, v12
        v_cvt_pk_bf16_f32 v8, v8, v8
        s_mov_b32 exec_lo, 0xf
        s_mov_b32 exec_hi, 0xf
        ds_write_b32 v15, v8
        s_mov_b64 exec, -1
        v_lshrrev_b32 v2, 4, v0
        v_lshlrev_b32 v2, 5, v2
        v_bfe_u32 v3, v0, 3, 1
        v_lshlrev_b32 v3, 4, v3
        v_add_u32 v2, v2, v3
        v_add_u32 v2, {T2}, v2
        s_mul_i32 s29, s31, 5120
        s_lshl_b32 s30, s4, 10
        s_add_u32 s29, s29, s30
        s_add_u32 s29, s29, {WS_DP}
        v_lshrrev_b32 v4, 5, v0
        v_lshlrev_b32 v4, 9, v4
        v_and_b32 v3, 15, v0
        v_lshlrev_b32 v3, 5, v3
        v_add_u32 v4, v4, v3
        v_bfe_u32 v3, v0, 4, 1
        v_lshlrev_b32 v3, 4, v3
        v_add3_u32 v4, v4, v3, s29
        s_waitcnt lgkmcnt(0)
        s_barrier
        s_cmp_ge_u32 s4, 5
        s_cbranch_scc1 L_FIN
        ds_read_b128 v[96:99], v2
        ds_read_b128 v[100:103], v2 offset:128
        s_waitcnt lgkmcnt(1)""")
        for n in range(8):
            if n == 4: a("s_waitcnt lgkmcnt(0)")
            ar = 144 + (n & 1)*4
            for r in range(4): a(f"v_and_b32 v{ar+r}, v{96+n}, v{MK+r}")
            c = "0" if n == 0 else "v[128:131]"
            a(f"v_mfma_f32_16x16x32_bf16 v[128:131], v[{ar}:{ar+3}], v[{DW+4*n}:{DW+4*n+3}], {c}")
        self.tagput(128)
        a("global_store_dwordx4 v4, v[128:131], s[10:11] sc1")
        self.stamp(6)
        self.dstamp(12, 80, 0)
        a("s_endpgm")
        a(f"""L_FIN:
        s_cmp_eq_u32 s4, 5
        s_cbranch_scc0 L_exit
        s_cmp_ge_u32 s31, 40
        s_cbranch_scc1 L_exit
        v_lshrrev_b32 v2, 3, v0
        v_mul_u32_u24 v2, {6*5120}, v2
        v_and_b32 v3, 7, v0
        v_lshlrev_b32 v3, 4, v3
        v_add_u32 v2, v2, v3
        s_lshl_b32 s29, s31, 7
        s_add_u32 s29, s29, {WS_DP}
        v_add_u32 v2, s29, v2
        s_lshl_b32 s29, s31, 7
        s_add_u32 s29, s29, {L_X1}
        v_add_u32 v4, s29, v3
        ds_read_b128 v[40:43], v4
        s_lshl_b32 s29, s31, 3
        v_add_u32 v8, s29, v0
        v_lshrrev_b32 v3, 6, v8
        v_lshlrev_b32 v3, 8, v3
        v_bfe_u32 v4, v8, 5, 1
        v_mul_u32_u24 v4, 1280, v4
        v_add_u32 v3, v3, v4
        v_and_b32 v4, 31, v8
        v_lshlrev_b32 v4, 3, v4
        v_add_u32 v8, v3, v4
        s_mov_b32 s30, 5120
        L_FIN_poll:
        v_mov_b32 v4, v2""")
        for i in range(6):
            a(f"global_load_dwordx4 v[{16+4*i}:{19+4*i}], v4, s[10:11] sc1")
            if i < 5: a("v_add_u32 v4, s30, v4")
        a("s_waitcnt vmcnt(0)")
        for i in range(6): self.tagchk(16+4*i, first=(i == 0))
        self.poll_end("L_FIN_poll")
        self.stamp(7)
        for i in range(4):
            a(f"v_add_f32 v{16+i}, v{16+i}, v{20+i}")
            a(f"v_add_f32 v{24+i}, v{24+i}, v{28+i}")
            a(f"v_add_f32 v{32+i}, v{32+i}, v{36+i}")
        for i in range(4): a(f"v_add_f32 v{16+i}, v{16+i}, v{24+i}")
        for i in range(4): a(f"v_add_f32 v{16+i}, v{16+i}, v{32+i}")
        self.dpp_sum([16,17,18,19], ("row_ror:8",))
        for i in range(4): a(f"v_mov_b32 v{20+i}, v{16+i}")
        for i in range(4): a(f"v_permlane16_swap_b32 v{16+i}, v{20+i}")
        for i in range(4): a(f"v_add_f32 v{16+i}, v{16+i}, v{20+i}")
        for i in range(4): a(f"v_mov_b32 v{20+i}, v{16+i}")
        for i in range(4): a(f"v_permlane32_swap_b32 v{16+i}, v{20+i}")
        for i in range(4): a(f"v_add_f32 v{16+i}, v{16+i}, v{20+i}")
        a("s_waitcnt lgkmcnt(0)")
        self.bf(16, 4)
        for i in range(4): a(f"v_mul_f32 v{16+i}, v{16+i}, v{GB+i}")
        self.bf(16, 4)
        for i in range(4): a(f"v_add_f32 v{16+i}, v{16+i}, v{40+i}")
        a(f"""v_cvt_pk_bf16_f32 v16, v16, v17
        v_cvt_pk_bf16_f32 v17, v18, v19
        s_mov_b64 exec, 0xff
        global_store_dwordx2 v8, v[16:17], s[14:15]
        s_cmp_eq_u32 s31, 0
        s_cbranch_scc0 L_FIN_done
        s_mov_b64 exec, 1
        v_mov_b32 v2, 0
        v_mov_b32 v3, s7
        global_store_dword v2, v3, s[10:11]
        L_FIN_done:""")
        if self.P.get("calib"):
            a(f"""L_cal:
            s_memrealtime s[90:91]
            s_waitcnt lgkmcnt(0)
            s_sub_u32 s90, s90, s92
            s_cmp_lt_u32 s90, {self.P["calib"]}
            s_cbranch_scc1 L_cal""")
        self.stamp(8)
        self.dstamp(13, 80, 5)
        a("s_endpgm")

    def qunit(self, ureg, d1, d2):
        self.a(f"""s_mul_i32 s{d2}, s{ureg}, 43
        s_lshr_b32 s{d2}, s{d2}, 8
        s_mul_i32 s{d1}, s{d2}, 6
        s_sub_u32 s{d1}, s{ureg}, s{d1}
        s_mul_i32 s3, s5, 6
        s_add_u32 s{d1}, s{d1}, s3""")
    def unit_dma(self, treg, i1, i2, ldsbase, lab, lim):
        a = self.a
        a(f"""s_cmp_eq_u32 s{treg}, 2
        s_cselect_b32 s40, s12, s14
        s_cselect_b32 s41, s13, s15
        s_mov_b32 s42, 4915200
        s_cselect_b32 s42, 7864320, s42
        s_mov_b32 s43, 0x20000
        s_movk_i32 s44, 7680
        s_cselect_b32 s44, 12288, s44
        v_lshrrev_b32 v2, 4, v0
        v_mul_lo_u32 v2, s44, v2
        v_and_b32 v3, 15, v0
        v_lshlrev_b32 v3, 4, v3
        v_add_u32 v2, v2, v3
        s_mul_i32 s45, s{i2}, 160
        s_mul_i32 s45, s45, s44
        s_lshl_b32 s46, s{i1}, 8
        s_add_u32 s45, s45, s46
        s_lshl_b32 s44, s44, 2
        s_mov_b32 m0, {ldsbase}
        s_movk_i32 s46, 40
        {lab}:
        buffer_load_dwordx4 v2, s[40:43], s45 offen{self.NT} lds
        s_add_u32 s45, s45, s44
        s_add_u32 m0, m0, 1024""")
        if lim: a(f"s_waitcnt vmcnt({lim-1})")
        a(f"""s_sub_u32 s46, s46, 1
        s_cmp_lg_u32 s46, 0
        s_cbranch_scc1 {lab}""")

    def L_wave(self):
        a = self.a; P = self.P; NT = self.NT
        limL = P.get("limL", 12)
        a.label("L_L")
        a(f"""s_setprio {P.get("prioL",2)}
        s_cmp_lt_u32 s6, 10
        s_cbranch_scc1 L_L_wo
        s_cmp_lt_u32 s6, 16
        s_cbranch_scc1 L_L_ffn
        s_sub_u32 s20, s6, 16
        s_cmp_lt_u32 s20, 10
        s_cbranch_scc1 L_L_mod
        s_cmp_lt_u32 s20, 13
        s_cbranch_scc1 L_exit
        s_add_u32 s21, s20, 8
        s_mov_b32 s30, 2""")
        self.qunit(21, 31, 32)
        a(f"""s_branch L_L_unit
        L_L_mod:
        s_mul_i32 s21, s5, 10
        s_add_u32 s21, s21, s20
        s_lshr_b32 s31, s21, 2
        s_add_u32 s31, s31, 10
        s_and_b32 s32, s21, 3
        s_mov_b32 s30, 1
        L_L_unit:
        s_load_dwordx2 s[12:13], s[0:1], 24
        s_load_dwordx2 s[14:15], s[0:1], 80
        s_waitcnt lgkmcnt(0)
        s_barrier""")
        self.unit_dma(30, 31, 32, L_SLOT1, "L_L_unit_loop", limL)
        a(f"""s_waitcnt vmcnt(0)
        v_mov_b32 v2, {FLAGL}
        v_mov_b32 v3, 1
        ds_write_b32 v2, v3
        s_waitcnt lgkmcnt(0)
        s_endpgm
        L_L_wo:
        s_load_dwordx2 s[40:41], s[0:1], 32
        v_lshrrev_b32 v2, 3, v0
        v_mul_u32_u24 v2, 1280, v2
        v_and_b32 v3, 7, v0
        v_lshlrev_b32 v3, 4, v3
        v_add_u32 v2, v2, v3
        s_mov_b32 s42, 7864320
        s_mov_b32 s43, 0x20000
        s_mul_i32 s45, s5, {768*1280}
        s_lshl_b32 s46, s6, 7
        s_add_u32 s45, s45, s46
        s_mov_b32 m0, {L_WO}
        s_movk_i32 s46, 96
        s_waitcnt lgkmcnt(0)
        s_barrier
        L_L_wo_loop:
        buffer_load_dwordx4 v2, s[40:43], s45 offen{NT} lds
        s_add_u32 s45, s45, 10240
        s_add_u32 m0, m0, 1024
        s_waitcnt vmcnt({limL-1})
        s_sub_u32 s46, s46, 1
        s_cmp_lg_u32 s46, 0
        s_cbranch_scc1 L_L_wo_loop
        s_waitcnt vmcnt(0)""")
        self.stamp(1)
        a(f"""s_endpgm
        L_L_ffn:
        s_load_dwordx4 s[12:15], s[0:1], 48
        s_load_dwordx2 s[40:41], s[0:1], 64
        s_mul_i32 s31, s5, 6
        s_add_u32 s31, s31, s6
        s_sub_u32 s31, s31, 10
        v_lshrrev_b32 v2, 3, v0
        v_mul_u32_u24 v2, 3072, v2
        v_and_b32 v3, 3, v0
        v_lshlrev_b32 v3, 4, v3
        v_add_u32 v2, v2, v3
        s_lshl_b32 s29, s31, 6
        v_add_u32 v2, s29, v2
        v_bfe_u32 v3, v0, 2, 1
        v_cmp_eq_u32 vcc, 1, v3
        s_waitcnt lgkmcnt(0)
        v_mov_b32 v4, s12
        v_mov_b32 v5, s13
        v_mov_b32 v6, s14
        v_mov_b32 v7, s15
        v_cndmask_b32 v4, v4, v6, vcc
        v_cndmask_b32 v5, v5, v7, vcc
        v_add_co_u32 v4, vcc, v4, v2
        v_addc_co_u32 v5, vcc, 0, v5, vcc
        s_mov_b32 m0, {L_GU}
        s_movk_i32 s46, 80
        s_movk_i32 s44, 24576
        s_barrier
        L_L_gu_loop:
        global_load_lds_dwordx4 v[4:5], off{NT}
        v_add_co_u32 v4, vcc, s44, v4
        v_addc_co_u32 v5, vcc, 0, v5, vcc
        s_add_u32 m0, m0, 1024
        s_waitcnt vmcnt({limL-1})
        s_sub_u32 s46, s46, 1
        s_cmp_lg_u32 s46, 0
        s_cbranch_scc1 L_L_gu_loop
        v_lshrrev_b32 v2, 4, v0
        v_mul_u32_u24 v2, 1280, v2
        v_and_b32 v3, 15, v0
        v_lshlrev_b32 v3, 4, v3
        v_add_u32 v2, v2, v3
        s_mov_b32 s42, 1966080
        s_mov_b32 s43, 0x20000
        s_mul_i32 s47, s31, {32*1280}
        s_mov_b32 s48, 0
        L_L_dn_outer:
        s_add_u32 s45, s47, s48
        s_movk_i32 s46, 8
        L_L_dn_loop:
        buffer_load_dwordx4 v2, s[40:43], s45 offen{NT} lds
        s_add_u32 s45, s45, 5120
        s_add_u32 m0, m0, 1024
        s_waitcnt vmcnt({limL-1})
        s_sub_u32 s46, s46, 1
        s_cmp_lg_u32 s46, 0
        s_cbranch_scc1 L_L_dn_loop
        s_add_u32 s48, s48, 256
        s_cmp_lt_u32 s48, 1280
        s_cbranch_scc1 L_L_dn_outer
        s_waitcnt vmcnt(0)""")
        self.stamp(1)
        a("s_endpgm")

    def F_wave(self):
        a = self.a; P = self.P
        FM = 124
        a.label("L_F")
        a(f"""s_setprio 3
        s_load_dwordx2 s[12:13], s[0:1], 24
        s_load_dwordx2 s[14:15], s[0:1], 80
        s_load_dwordx2 s[16:17], s[0:1], 72
        s_load_dwordx2 s[18:19], s[0:1], 0
        v_mov_b32 v2, {FLAGL}
        v_mov_b32 v3, 0
        ds_write_b32 v2, v3
        s_mov_b32 s20, 0
        s_mov_b32 s25, 0
        s_mov_b32 s39, 0
        s_cmp_lt_u32 s6, 10
        s_cbranch_scc1 L_F_wo
        s_cmp_lt_u32 s6, 16
        s_cbranch_scc1 L_F_dec_done
        s_sub_u32 s33, s6, 16
        s_mul_i32 s34, s5, 10
        s_add_u32 s34, s34, s33
        s_lshr_b32 s26, s34, 2
        s_add_u32 s26, s26, 10
        s_and_b32 s27, s34, 3
        s_mov_b32 s28, {L_SLOT1}
        s_mov_b32 s23, {L_SLOT0}
        s_cmp_lt_u32 s33, 5
        s_cbranch_scc0 L_F_d2
        s_mul_i32 s34, s5, 5
        s_add_u32 s34, s34, s33
        s_mov_b32 s20, 1
        s_lshr_b32 s21, s34, 2
        s_and_b32 s22, s34, 3
        s_mov_b32 s25, 1
        s_mov_b32 s39, 1
        s_branch L_F_dec_done
        L_F_d2:
        s_add_u32 s34, s33, 5""")
        self.qunit(34, 21, 22)
        a(f"""s_mov_b32 s20, 2
        s_cmp_lt_u32 s33, 10
        s_cselect_b32 s25, 1, 0
        s_cmp_lt_u32 s33, 13
        s_cbranch_scc1 L_F_dec_done
        s_mov_b32 s25, 2
        s_add_u32 s26, s21, 3
        s_mov_b32 s27, s22
        s_branch L_F_dec_done
        L_F_wo:
        s_mov_b32 s34, s6""")
        self.qunit(34, 21, 22)
        a(f"""s_mov_b32 s20, 2
        s_mov_b32 s23, {L_SLOT0}
        L_F_dec_done:
        s_waitcnt lgkmcnt(0)
        s_load_dword s7, s[10:11], 0
        s_cmp_eq_u32 s20, 0
        s_cbranch_scc1 L_F_nodma
        v_lshrrev_b32 v2, 5, v0
        v_mul_u32_u24 v2, 1280, v2
        v_and_b32 v3, 31, v0
        v_lshlrev_b32 v3, 3, v3
        v_add_u32 v2, v2, v3""")
        for k in range(5): a(f"global_load_dwordx2 v[{8+2*k}:{9+2*k}], v2, s[18:19] offset:{k*256}")
        a(f"""s_cmp_eq_u32 s20, 2
        s_cselect_b32 s36, s18, s16
        s_cselect_b32 s37, s19, s17
        s_mul_i32 s33, s22, 320
        v_lshlrev_b32 v2, 3, v0
        v_add_u32 v2, s33, v2
        s_mov_b32 exec_lo, -1
        s_mov_b32 exec_hi, 0xff
        global_load_dwordx2 v[18:19], v2, s[36:37]
        global_load_dwordx2 v[20:21], v2, s[36:37] offset:1280
        s_mov_b64 exec, -1""")
        self.unit_dma(20, 21, 22, L_SLOT0, "L_F_dma_loop", 0)
        a("L_F_nodma:")
        self.masks(FM)
        a("v_mov_b32 v5, 0xffffff00")
        a("s_waitcnt lgkmcnt(0)")
        self.tags()
        self.stamp(0)
        a(f"""s_cmp_eq_u32 s39, 1
        s_cbranch_scc1 L_F_nobar
        s_barrier
        L_F_nobar:
        s_mov_b32 s35, -1
        s_mov_b32 s38, 0
        s_cmp_eq_u32 s20, 0
        s_cbranch_scc1 L_F_gath
        s_waitcnt vmcnt(40)
        L_F_job:
        s_cmp_eq_u32 s20, 2
        s_cbranch_scc1 L_F_prepQ
        ; ---- MOD prep: silu(c slice in v18..21)""")
        for b in range(2):
            s0 = 18+2*b; d = 24+4*b
            a(f"""v_lshlrev_b32 v{d}, 16, v{s0}
            v_and_b32 v{d+1}, 0xffff0000, v{s0}
            v_lshlrev_b32 v{d+2}, 16, v{s0+1}
            v_and_b32 v{d+3}, 0xffff0000, v{s0+1}""")
        for i in range(8): a(f"v_mul_f32 v{32+i}, 0xbfb8aa3b, v{24+i}")
        for i in range(8): a(f"v_exp_f32 v{32+i}, v{32+i}")
        for i in range(8): a(f"v_add_f32 v{32+i}, 1.0, v{32+i}")
        for i in range(8): a(f"v_rcp_f32 v{32+i}, v{32+i}")
        for i in range(8): a(f"v_mul_f32 v{112+i}, v{24+i}, v{32+i}")
        a("""s_mov_b32 s35, -1
        s_mov_b32 exec_lo, -1
        s_mov_b32 exec_hi, 0xff
        s_branch L_F_table
        L_F_prepQ:
        s_cmp_eq_u32 s35, s22
        s_cbranch_scc1 L_F_gemv
        s_mov_b32 s35, s22""")
        for k in range(10):
            a(f"v_lshlrev_b32 v{24+2*k}, 16, v{8+k}")
            a(f"v_and_b32 v{25+2*k}, 0xffff0000, v{8+k}")
        a("v_add_f32 v44, v24, v25")
        a("v_add_f32 v45, v26, v27")
        for k in range(4, 20, 2):
            a(f"v_add_f32 v44, v44, v{24+k}")
            a(f"v_add_f32 v45, v45, v{25+k}")
        a("v_add_f32 v44, v44, v45")
        def red32(r, t):
            self.dpp_sum([r], ("row_ror:8", "row_ror:4", "row_ror:2", "row_ror:1"))
            a(f"""v_mov_b32 v{t}, v{r}
            v_permlane16_swap_b32 v{r}, v{t}
            v_add_f32 v{r}, v{r}, v{t}""")
        red32(44, 45)
        a("v_mul_f32 v44, 0x3acccccd, v44")
        for k in range(20): a(f"v_sub_f32 v{24+k}, v{24+k}, v44")
        a("v_mul_f32 v46, v24, v24")
        a("v_mul_f32 v47, v25, v25")
        for k in range(2, 20, 2):
            a(f"v_fmac_f32 v46, v{24+k}, v{24+k}")
            a(f"v_fmac_f32 v47, v{25+k}, v{25+k}")
        a("v_add_f32 v46, v46, v47")
        red32(46, 45)
        a("v_mul_f32 v46, 0x3acccccd, v46")
        self.bf(44); self.bf(46)
        a("v_add_f32 v46, 0x3727c5ac, v46")
        self.bf(46)
        a("v_sqrt_f32 v46, v46")
        self.bf(46)
        a("v_rcp_f32 v46, v46")
        a(f"""v_readlane_b32 s48, v44, 0
        v_readlane_b32 s49, v46, 0
        v_readlane_b32 s50, v44, 32
        v_readlane_b32 s51, v46, 32
        s_mul_i32 s33, s22, 160
        v_lshlrev_b32 v2, 2, v0
        v_add_u32 v2, s33, v2
        v_lshrrev_b32 v3, 7, v2
        v_lshlrev_b32 v3, 12, v3
        v_and_b32 v2, 127, v2
        v_lshlrev_b32 v2, 2, v2
        v_add_u32 v2, v2, v3
        v_add_u32 v2, {WS_MODP}, v2
        v_add_u32 v3, {5*4096}, v2
        s_mov_b32 exec_lo, -1
        s_mov_b32 exec_hi, 0xff""")
        for b in range(2):
            t = 24+4*b; xs = 18+2*b
            a(f"""v_lshlrev_b32 v{t}, 16, v{xs}
            v_and_b32 v{t+1}, 0xffff0000, v{xs}
            v_lshlrev_b32 v{t+2}, 16, v{xs+1}
            v_and_b32 v{t+3}, 0xffff0000, v{xs+1}""")
        for b in range(2):
            t = 24+4*b
            for i in range(4): a(f"v_subrev_f32 v{t+i}, s{48+2*b}, v{t+i}")
            self.bf(t, 4)
            for i in range(4): a(f"v_mul_f32 v{t+i}, s{49+2*b}, v{t+i}")
            self.bf(t, 4)
        G_ = 48
        a("L_F_pollh:")
        for wh in range(2):
            for b in range(2):
                for ks in range(4):
                    r = G_ + ((wh*2+b)*4+ks)*4
                    a(f"global_load_dwordx4 v[{r}:{r+3}], v{2+wh}, s[10:11] offset:{ks*1024+b*512} sc1")
        a("s_waitcnt vmcnt(0)")
        for g in range(16): self.tagchk(G_+4*g, first=(g == 0))
        self.poll_end("L_F_pollh")
        self.stamp(1)
        self.dstamp(5, 0, 8)
        for grp in range(4):
            r = G_ + grp*16
            for i in range(4):
                a(f"v_add_f32 v{r+i}, v{r+i}, v{r+4+i}")
                a(f"v_add_f32 v{r+8+i}, v{r+8+i}, v{r+12+i}")
            for i in range(4): a(f"v_add_f32 v{r+i}, v{r+i}, v{r+8+i}")
            self.bf(r, 4)
        for b in range(2):
            t = 24+4*b; d = 112+4*b; sa = G_+b*16; ca = G_+32+b*16
            for i in range(4): a(f"v_add_f32 v{ca+i}, 1.0, v{ca+i}")
            self.bf(ca, 4)
            for i in range(4): a(f"v_mul_f32 v{t+i}, v{t+i}, v{ca+i}")
            self.bf(t, 4)
            for i in range(4): a(f"v_add_f32 v{d+i}, v{t+i}, v{sa+i}")
        a("L_F_table:")
        for i in range(8): a(f"v_cvt_pk_bf16_f32 v{112+i}, v{112+i}, v{112+i}")
        a(f"""v_lshrrev_b32 v2, 2, v0
        v_lshlrev_b32 v2, 7, v2
        v_and_b32 v3, 3, v0
        v_lshlrev_b32 v3, 2, v3
        v_add_u32 v2, v2, v3
        v_add_u32 v2, {FTAB}, v2
        ds_write2_b32 v2, v112, v113 offset0:0 offset1:8
        ds_write2_b32 v2, v114, v115 offset0:16 offset1:24
        ds_write2_b32 v2, v116, v117 offset0:4 offset1:12
        ds_write2_b32 v2, v118, v119 offset0:20 offset1:28
        s_mov_b64 exec, -1
        L_F_gemv:
        s_cmp_eq_u32 s23, {L_SLOT0}
        s_cbranch_scc1 L_F_wown
        v_mov_b32 v2, {FLAGL}
        L_F_wflag:
        ds_read_b32 v3, v2
        s_waitcnt lgkmcnt(0)
        v_readfirstlane_b32 s33, v3
        s_cmp_eq_u32 s33, 1
        s_cbranch_scc1 L_F_wown
        s_add_u32 s95, s95, 1
        s_cmp_gt_u32 s95, 0x100000
        s_cbranch_scc1 L_F_wown
        s_sleep 2
        s_branch L_F_wflag
        L_F_wown:
        s_waitcnt vmcnt(0) lgkmcnt(0)""")
        self.stamp(2)
        def rd(tab, w):
            a(f"""ds_read_b128 v[{tab}:{tab+3}], v2
            ds_read_b128 v[{w}:{w+3}], v3
            ds_read_b128 v[{w+4}:{w+7}], v3 offset:1024
            ds_read_b128 v[{w+8}:{w+11}], v3 offset:2048
            ds_read_b128 v[{w+12}:{w+15}], v3 offset:3072
            v_add_u32 v2, 128, v2
            v_add_u32 v3, 4096, v3""")
        def cmp_(tab, w):
            for u in range(4):
                ar = 88+(u & 1)*4
                for r in range(4): a(f"v_and_b32 v{ar+r}, v{tab+u}, v{FM+r}")
                a(f"v_mfma_f32_16x16x32_bf16 v[96:99], v[{ar}:{ar+3}], v[{w+4*u}:{w+4*u+3}], v[96:99]")
        a(f"""v_lshrrev_b32 v2, 4, v0
        v_lshlrev_b32 v2, 5, v2
        v_bfe_u32 v3, v0, 3, 1
        v_lshlrev_b32 v3, 4, v3
        v_add_u32 v2, v2, v3
        v_add_u32 v2, {FTAB}, v2
        v_lshlrev_b32 v3, 4, v0
        v_add_u32 v3, s23, v3""")
        rd(48, 52)
        a("""v_mov_b32 v96, 0
        v_mov_b32 v97, 0
        v_mov_b32 v98, 0
        v_mov_b32 v99, 0
        s_movk_i32 s33, 5
        L_F_gloop:""")
        rd(68, 72)
        a("s_waitcnt lgkmcnt(5)")
        cmp_(48, 52)
        rd(48, 52)
        a("s_waitcnt lgkmcnt(5)")
        cmp_(68, 72)
        a(f"""s_sub_u32 s33, s33, 1
        s_cmp_lg_u32 s33, 0
        s_cbranch_scc1 L_F_gloop
        s_lshl_b32 s33, s21, 2
        s_add_u32 s33, s33, s22
        s_lshl_b32 s33, s33, 10
        s_cmp_eq_u32 s20, 2
        s_mov_b32 s34, {WS_MODP}
        s_cselect_b32 s34, {WS_QP}, s34
        s_add_u32 s33, s33, s34
        v_lshrrev_b32 v2, 5, v0
        v_lshlrev_b32 v2, 9, v2
        v_and_b32 v3, 15, v0
        v_lshlrev_b32 v3, 5, v3
        v_add_u32 v2, v2, v3
        v_bfe_u32 v3, v0, 4, 1
        v_lshlrev_b32 v3, 4, v3
        v_add3_u32 v2, v2, v3, s33""")
        self.tagput(96)
        a("global_store_dwordx4 v2, v[96:99], s[10:11] sc1")
        self.stamp(3)
        a(f"""s_waitcnt lgkmcnt(0)
        s_cmp_eq_u32 s39, 1
        s_cbranch_scc0 L_F_nobar2
        s_mov_b32 s39, 0
        s_barrier
        L_F_nobar2:
        s_add_u32 s38, s38, 1
        s_cmp_ge_u32 s38, 2
        s_cbranch_scc1 L_F_gath
        s_cmp_eq_u32 s25, 0
        s_cbranch_scc1 L_F_gath
        s_mov_b32 s20, s25
        s_mov_b32 s21, s26
        s_mov_b32 s22, s27
        s_mov_b32 s23, s28
        s_cmp_eq_u32 s20, 2
        s_cbranch_scc1 L_F_job
        s_mul_i32 s33, s22, 320
        v_lshlrev_b32 v2, 3, v0
        v_add_u32 v2, s33, v2
        s_mov_b32 exec_lo, -1
        s_mov_b32 exec_hi, 0xff
        global_load_dwordx2 v[18:19], v2, s[16:17]
        global_load_dwordx2 v[20:21], v2, s[16:17] offset:1280
        s_mov_b64 exec, -1
        s_waitcnt vmcnt(0)
        s_branch L_F_job
        L_F_gath:
        s_lshr_b32 s33, s6, 2
        s_lshr_b32 s34, s33, 2
        s_and_b32 s33, s33, 3
        s_mul_i32 s33, s33, 192
        v_lshlrev_b32 v2, 2, v0
        v_add_u32 v2, s33, v2
        v_lshrrev_b32 v3, 7, v2
        s_mul_i32 s33, s5, 6
        v_add_u32 v3, s33, v3
        v_lshlrev_b32 v3, 12, v3
        v_and_b32 v2, 127, v2
        v_lshlrev_b32 v2, 2, v2
        s_lshl_b32 s34, s34, 9
        s_add_u32 s34, s34, {WS_QP}
        v_add3_u32 v8, v2, v3, s34
        s_mov_b32 exec_lo, -1
        s_mov_b32 exec_hi, 0xffff""")
        self.gather([8], "L_F_q_poll", 16)
        a(f"""s_mov_b32 s52, 0x07060302
        v_perm_b32 v16, v17, v16, s52
        v_perm_b32 v17, v19, v18, s52
        v_lshlrev_b32 v2, 3, v0
        v_add_u32 v2, {QTAB}, v2
        ds_write_b64 v2, v[16:17]
        s_waitcnt lgkmcnt(0)""")
        self.stamp(4)
        self.dstamp(6, 0, 8)

    def build(self):
        a = self.a
        a.lines += [f"; @launch grid=(256,1,1) block=(640,1,1) lds={LDS_BYTES}", '.amdgcn_target "amdgcn-amd-amdhsa--gfx950"',
                    ".text", f".globl {KN}", ".p2align 8", f".type {KN},@function", f"{KN}:"]
        a("""s_cmp_ge_u32 s2, 256
        s_cbranch_scc1 L_exit
        s_load_dwordx2 s[10:11], s[0:1], 104
        v_lshrrev_b32 v1, 6, v0
        v_and_b32 v0, 63, v0
        v_readfirstlane_b32 s4, v1
        s_mov_b32 s95, 0
        s_and_b32 s5, s2, 7
        s_lshr_b32 s6, s2, 3
        s_cmp_eq_u32 s4, 8
        s_cbranch_scc1 L_F
        s_cmp_eq_u32 s4, 9
        s_cbranch_scc1 L_L""")
        self.A_wave(); self.WO(); self.FFN(); self.L_wave(); self.F_wave()
        a("""L_exit:
        s_endpgm""")
        out = a.finalize()
        out += ['.section .rodata,"a"', ".p2align 6", f".amdhsa_kernel {KN}",
                "  .amdhsa_next_free_vgpr 168", "  .amdhsa_next_free_sgpr 102", "  .amdhsa_accum_offset 168",
                "  .amdhsa_group_segment_fixed_size 0", "  .amdhsa_kernarg_size 112", "  .amdhsa_user_sgpr_count 2",
                "  .amdhsa_user_sgpr_kernarg_segment_ptr 1", "  .amdhsa_system_sgpr_workgroup_id_x 1",
                "  .amdhsa_float_denorm_mode_32 3", ".end_amdhsa_kernel"]
        return "\n".join(out) + "\n"

def gen(P): return G(P).build()

if __name__ == "__main__":
    p = argparse.ArgumentParser()
    p.add_argument("-o", default="k2.s"); p.add_argument("--stamps", type=int, default=0); p.add_argument("--nt", type=int, default=1)
    p.add_argument("--lims", default=""); p.add_argument("--limL", type=int, default=12); p.add_argument("--sleep", type=int, default=1); p.add_argument("--dbg", type=int, default=0); p.add_argument("--calib", type=int, default=0)
    args = p.parse_args()
    P = dict(stamps=bool(args.stamps), nt=bool(args.nt), limL=args.limL, sleep=args.sleep, dbg=bool(args.dbg), calib=args.calib)
    if args.lims: P["lims"] = [int(c) for c in args.lims.split(",")]
    open(args.o, "w").write(gen(P))
```
